```python
import torch

def _softmax(x, axis=-1):
    return torch.softmax(x, dim=axis)
def _gelu(x):
    return torch.nn.functional.gelu(x, approximate="tanh")
def _silu(x):
    return torch.nn.functional.silu(x)
def _sigmoid(x):
    return torch.sigmoid(x)
def _layernorm(x, axis=-1, eps=1e-5):
    m = x.mean(dim=axis, keepdim=True)
    v = x.var(dim=axis, keepdim=True, unbiased=False)
    return (x - m) / torch.sqrt(v + eps)
def _scatter_add(tgt, idx, src, axis=0):
    return tgt.clone().index_add_(axis, idx, src)
def _segment_sum(src, seg, n):
    out = torch.zeros((n,) + src.shape[1:], dtype=src.dtype)
    return out.index_add_(0, seg, src)
def _pad(x, pw):
    flat = tuple(v for pair in reversed(pw) for v in pair)
    return torch.nn.functional.pad(x, flat)

kernel_name = 'recurrent_scan__ssm_conv_h3__dense_activation_silu__prompt'

def setup_inputs():

    _w = (lambda a: (lambda t: t.to(torch.bfloat16) if t.is_floating_point() else t)(torch.as_tensor(a)))
    def _A_setup():
        B, S, D = 1, 2048, 576
        ks = 4
        return {
            "q": _w((lambda *s: torch.randn(*s, dtype=torch.bfloat16) * 0.05)(B, S, D)),
            "k": _w((lambda *s: torch.randn(*s, dtype=torch.bfloat16) * 0.8)(B, S, D)),
            "v": _w((lambda *s: torch.randn(*s, dtype=torch.bfloat16) * 0.8)(B, S, D)),
            "shift_k": _w((lambda *s: torch.randn(*s, dtype=torch.bfloat16) * 0.8)(D, ks) * 0.5),
            "ssm_k": _w((lambda *s: torch.randn(*s, dtype=torch.bfloat16) * 0.8)(D, S) * (1.0 / S ** 0.5)),
            "ssm_D": _w((lambda *s: torch.randn(*s, dtype=torch.bfloat16) * 0.8)(D)),
        }
    _A_in = _A_setup()

    def _B_setup():
        B, S, D, F = 1, 2048, 576, 4608
        return {
            "x": _w((lambda *s: torch.randn(*s, dtype=torch.bfloat16) * 0.05)(B, S, D)),
            "w1": _w((lambda *s: torch.randn(*s, dtype=torch.bfloat16) * 0.8)(D, F) * (D ** -0.5)),
            "w2": _w((lambda *s: torch.randn(*s, dtype=torch.bfloat16) * 0.2)(F, D) * (F ** -0.5)),
        }
    _B_in = _B_setup()

    return {
        "A_q": _A_in["q"],
        "A_k": _A_in["k"],
        "A_v": _A_in["v"],
        "A_shift_k": _A_in["shift_k"],
        "A_ssm_k": _A_in["ssm_k"],
        "A_ssm_D": _A_in["ssm_D"],
        "B_x": _B_in["x"],
        "B_w1": _B_in["w1"],
        "B_w2": _B_in["w2"],
    }

def reference(A_q, A_k, A_v, A_shift_k, A_ssm_k, A_ssm_D, B_x, B_w1, B_w2):
    def _A_ref(q, k, v, shift_k, ssm_k, ssm_D):
        B, S, D = q.shape
        ks = shift_k.shape[-1]
        k_pad = _pad(k, ((0, 0), (ks - 1, 0), (0, 0)))
        k_shift = torch.zeros_like(k)
        for t in range(ks):
            k_shift = k_shift + k_pad[:, t:t + S, :] * shift_k[:, ks - 1 - t][None, None, :]
        kv = k_shift * v
        L = 2 * S
        kv_pad = _pad(kv, ((0, 0), (0, S), (0, 0)))
        kf_pad = _pad(ssm_k, ((0, 0), (0, S)))
        kv_f = (lambda x, axes=(-2,-1): torch.fft.rfft2(x.float(), dim=axes))(kv_pad[:, None, :, :], axes=(1, 2))
        kf_f = (lambda x, axes=(-2,-1): torch.fft.rfft2(x.float(), dim=axes))(kf_pad[:, None, :], axes=(1, 2))
        kf_f = (lambda x, *d: x.permute(*d))(kf_f, 1, 2, 0)
        y_f = kv_f * kf_f[None, :, :, :]
        y = (lambda x, s, axes=(-2,-1): torch.fft.irfft2(x, s=s, dim=axes).to(torch.bfloat16))(y_f, (1, L), axes=(1, 2))[:, 0, :S, :]
        y = y + kv * ssm_D[None, None, :]
        return q * y

    def _B_ref(x, w1, w2):
        h = torch.einsum("bsd,df->bsf", x, w1)
        h = _silu(h)
        out = torch.einsum("bsf,fd->bsd", h, w2)
        return out

    x = A_q
    xn = _layernorm(x, axis=-1)
    s = _A_ref(xn, A_k, A_v, A_shift_k, A_ssm_k, A_ssm_D)
    g = _silu(_B_ref(xn, B_w1, B_w2))
    return x + s * g
```

```python
import re

class G:
    def __init__(s):
        s.L = []
    def e(s, txt):
        for t in txt.split('\n'):
            t = t.strip()
            if t: s.L.append('  ' + t)
    def lab(s, name): s.L.append(name + ':')
    def c(s, txt): s.L.append('  ; ' + txt)
    def raw(s, txt): s.L.append(txt)
    def text(s): return '\n'.join(s.L) + '\n'

def vr(b, n): return f'v[{b}:{b+n-1}]' if n > 1 else f'v{b}'
def ar(b, n): return f'a[{b}:{b+n-1}]' if n > 1 else f'a{b}'
def sr(b, n): return f's[{b}:{b+n-1}]' if n > 1 else f's{b}'

def srd(g, d, base_lo, nbytes):
    g.e(f's_mov_b32 s{d}, s{base_lo}')
    g.e(f's_mov_b32 s{d+1}, s{base_lo+1}')
    g.e(f's_mov_b32 s{d+2}, {nbytes}')
    g.e(f's_mov_b32 s{d+3}, 0x00020000')

def kdesc(name, vgpr, accum, sgpr=100):
    return f'''.section .rodata,"a"
.p2align 6
.amdhsa_kernel {name}
  .amdhsa_next_free_vgpr {vgpr}
  .amdhsa_next_free_sgpr {sgpr}
  .amdhsa_accum_offset {accum}
  .amdhsa_group_segment_fixed_size 0
  .amdhsa_kernarg_size 96
  .amdhsa_user_sgpr_count 2
  .amdhsa_user_sgpr_kernarg_segment_ptr 1
  .amdhsa_system_sgpr_workgroup_id_x 1
.end_amdhsa_kernel
.text
'''

S = 2048; D = 576; F = 4608
QBYTES = S * D * 2
W1BYTES = D * F * 2
W2BYTES = F * D * 2
HBYTES = D * S * 2
WS_PART = 0
WS_UR = 0x1400000
UR_PITCH = 4112
WS_Y = 0x1800000
WS_STATS = 0x1C00000
WS_FLAG = 0x1E00000
WS_BYTES = 268435456
LOG2E = 1.4426950408889634
import struct
def f32(x): return '0x%08x' % struct.unpack('<I', struct.pack('<f', x))[0]
```

```python
from common import *

W1BASE = 0
W2BASE = 73728
XCH = 147456
K1_LDS = 155648
vTID, vLANE = 0, 1
vA1 = (2, 3); vA2O = (4, 5); vA2P = (6, 7)
vXW, vXR = 8, 9
vW1 = (10, 11); vW2 = (12, 13)
vT0, vT1 = 14, 15
HACC = (16, 32)
FO = (48, 56)
TMP = 64
SP0 = 72
OACC = 80
SP1 = 224
XN = 0
ARING = 144
FP = 176
NB = 8; LA = 7
sQ, sW1, sW2, sWS, sK, sV, sSK, sH = 24, 28, 32, 36, 40, 44, 48, 52
sOFF1, sOFF2 = 56, 65
sW, sMI, sX, sMT, sSP = 74, 75, 76, 77, 78
sM1, sM2, sCNT = 79, 80, 81

import os
STAMPS = os.environ.get('STAMPS', '0') == '1'
WS_STAMP = 0x1D00000
def stamp(g, k):
    if not STAMPS: return
    g.e('s_memtime s[92:93]')
    g.e('s_waitcnt lgkmcnt(0)')
    g.e(f'v_writelane_b32 v251, s92, {k}')
def stamp_out(g):
    if not STAMPS: return
    g.e(f's_lshl_b32 s92, s2, 2')
    g.e(f's_add_u32 s92, s92, s{sW}')
    g.e(f's_lshl_b32 s92, s92, 8')
    g.e(f's_add_u32 s92, s92, {WS_STAMP}')
    g.e(f'v_lshlrev_b32 v250, 2, v{vLANE}')
    g.e(f'buffer_store_dword v251, v250, {sr(sWS,4)}, s92 offen')

class Sched:
    def __init__(s, g):
        s.g = g
        s.lds = []
        s.vm = []
        s.emit = True
        s.ninstr = 0
    def e(s, txt):
        s.ninstr += 1
        if s.emit: s.g.e(txt)
    def lds_op(s, txt, tag):
        s.e(txt); s.lds.append(tag)
    def vm_op(s, txt, tag):
        s.e(txt); s.vm.append(tag)
    def need_lds(s, tags):
        idx = -1
        for i, t in enumerate(s.lds):
            if t in tags: idx = i
        return len(s.lds) - 1 - idx if idx >= 0 else None
    def need_vm(s, tags):
        idx = -1
        for i, t in enumerate(s.vm):
            if t in tags: idx = i
        return len(s.vm) - 1 - idx if idx >= 0 else None

def g2_order():
    o = [(0,'o',0),(0,'o',1),(1,'o',0),(1,'o',1),(0,'p',0),(0,'p',1),(1,'p',0),(1,'p',1)]
    for j in range(2, 9):
        o += [(j,'o',0),(j,'o',1),(j,'p',0),(j,'p',1)]
    return o
G2ORD = g2_order()

def frag_reads(kind, i, buf):
    d = ARING + 4 * buf
    if kind == 'G1':
        j, kp = i // 4, i % 4
        areg = vA1[1] if j == 8 else vA1[0]
        off = (j % 8) * 8192 + kp * 2048
        return [f'ds_read_b64_tr_b16 {ar(d,2)}, v{areg} offset:{off}',
                f'ds_read_b64_tr_b16 {ar(d+2,2)}, v{areg} offset:{off+512}']
    else:
        j, who, h = G2ORD[i]
        regs = vA2O if who == 'o' else vA2P
        areg = regs[1] if j == 8 else regs[0]
        off = (j % 8) * 8192 + h * 2048
        return [f'ds_read_b64_tr_b16 {ar(d,2)}, v{areg} offset:{off}',
                f'ds_read_b64_tr_b16 {ar(d+2,2)}, v{areg} offset:{off+1024}']

def mfma_text(kind, i, buf, par):
    a = ar(ARING + 4 * buf, 4)
    if kind == 'G1':
        h = vr(HACC[par], 16)
        c = '0' if i == 0 else h
        return f'v_mfma_f32_32x32x16_bf16 {h}, {a}, {ar(XN + 4*i, 4)}, {c}'
    else:
        j, who, h = G2ORD[i]
        o = vr(OACC + 16 * j, 16)
        b = vr(FO[par] + 4 * h, 4) if who == 'o' else ar(FP + 4 * h, 4)
        return f'v_mfma_f32_32x32x16_bf16 {o}, {a}, {b}, {o}'

def silu_ops(par):
    ops = []
    H = HACC[par]
    for p in range(8):
        t0 = TMP + 2 * (p % 4); t1 = t0 + 1
        r0, r1 = H + 2 * p, H + 2 * p + 1
        ops += [f'v_exp_f32 v{t0}, v{r0}', f'v_exp_f32 v{t1}, v{r1}',
                f'v_add_f32 v{t0}, 1.0, v{t0}', f'v_add_f32 v{t1}, 1.0, v{t1}',
                f'v_rcp_f32 v{t0}, v{t0}', f'v_rcp_f32 v{t1}, v{t1}',
                f'v_mul_f32 v{t0}, v{t0}, v{r0}', f'v_mul_f32 v{t1}, v{t1}, v{r1}',
                f'v_cvt_pk_bf16_f32 v{FO[par] + p}, v{t0}, v{t1}']
    return ops

def dma_pair(region, j):
    if region == 'w1':
        return (f's_add_u32 m0, s{sM1}, {j*8192}',
                f'buffer_load_dwordx4 v{vW1[0]}, {sr(sW1,4)}, s{sOFF1+j} offen lds',
                f'buffer_load_dwordx4 v{vW1[1]}, {sr(sW1,4)}, s{sOFF1+j} offen offset:1024 lds')
    else:
        return (f's_add_u32 m0, s{sM2}, {j*8192}',
                f'buffer_load_dwordx4 v{vW2[0]}, {sr(sW2,4)}, s{sOFF2+j} offen lds',
                f'buffer_load_dwordx4 v{vW2[1]}, {sr(sW2,4)}, s{sOFF2+j} offen offset:1024 lds')

SILU_K = 40
def spread(ops, first, last):
    n = last - first + 1
    d = {}
    for k, op in enumerate(ops):
        d.setdefault(first + (k * n) // len(ops), []).append(op)
    return d

def dma_period(items, base):
    d = {}
    for n, (region, j, tag) in enumerate(items):
        m0, a, b = dma_pair(region, j)
        s0 = base + 4 * n
        d.setdefault(s0, []).append(('s', m0, None))
        d.setdefault(s0 + 1, []).append(('vm', a, tag))
        d.setdefault(s0 + 3, []).append(('vm', b, tag))
    return d

def merge(*ds):
    r = {}
    for d in ds:
        for k, v in d.items(): r.setdefault(k, []).extend(v)
    return r

def run_segment(sch, mf, fill, barriers, seg, base_idx=0, look=None, waits=None, extra_need=None):
    got = {}
    allm = list(mf) + list(look or [])
    for n, (kind, i, par) in enumerate(mf):
        gi = base_idx + n
        if gi % 4 == 0:
            tags = {('f', seg, gi + k) for k in range(4)}
            if extra_need and n in extra_need: tags |= set(extra_need[n])
            for k in range(1, 4):
                if extra_need and (n + k) in extra_need: tags |= set(extra_need[n + k])
            w = sch.need_lds(tags)
            assert w is not None and w <= 15, (w, gi)
            sch.e(f's_waitcnt lgkmcnt({w})')
        sch.e(mfma_text(kind, i, gi % NB, par))
        if n + LA < len(allm):
            k2, i2, p2 = allm[n + LA]
            for t in frag_reads(k2, i2, (gi + LA) % NB):
                sch.lds_op(t, ('f', seg, gi + LA))
        for f in fill.get(n, []):
            if isinstance(f, str): sch.e(f)
            elif f[0] == 's': sch.e(f[1])
            elif f[0] == 'vm': sch.vm_op(f[1], f[2])
            elif f[0] == 'lds': sch.lds_op(f[1], f[2])
        if n in barriers:
            req = barriers[n]
            if req is not None:
                w = sch.need_vm(set(req))
                if w is None: w = 63
                got[n] = w
                if waits is not None and n in waits: w = waits[n]
                if w < 63: sch.e(f's_waitcnt vmcnt({w})')
            sch.e('s_barrier')
    return got

def prime(sch, mf, seg):
    for n in range(LA):
        k, i, p = mf[n]
        for t in frag_reads(k, i, n % NB):
            sch.lds_op(t, ('f', seg, n))

def tg(region, js, chunk): return [(region, j, chunk) for j in js]

def iteration(sch, it, base_idx, last_of_seg, waits=None):
    p2 = it % 2; p1 = (it + 1) % 2
    mf = [('G1', i, p1) for i in range(36)] + [('G2', i, p2) for i in range(36)]
    look = None if last_of_seg else [('G1', i, p2) for i in range(LA)]
    s_prev = silu_ops(p2)[SILU_K:]
    s_next = silu_ops(p1)[:SILU_K]
    fill = merge(
        {k: list(v) for k, v in spread(s_prev, 0, 25).items()},
        {k: list(v) for k, v in spread(s_next, 40, 71).items()},
        {27: [('lds', f'ds_write_b128 v{vXW}, {vr(FO[p2],4)}', ('xw', it))],
         28: [('lds', f'ds_write_b128 v{vXW}, {vr(FO[p2]+4,4)} offset:1024', ('xw', it))],
         36: [('lds', f'ds_read_b128 {ar(FP,4)}, v{vXR}', ('fp', it)),
              ('lds', f'ds_read_b128 {ar(FP+4,4)}, v{vXR} offset:1024', ('fp', it))]},
        dma_period([('w2', j, ('w2', j, it)) for j in (6, 7, 8)], 0),
    )
    if it + 2 <= 8:
        for g, js in ((1, (0, 1, 2)), (2, (3, 4, 5)), (3, (6, 7, 8))):
            fill = merge(fill, dma_period([('w1', j, ('w1', j, it + 2)) for j in js], 12 * g))
    for g, js in ((4, (0, 1, 2)), (5, (3, 4, 5))):
        fill = merge(fill, dma_period([('w2', j, ('w2', j, it + 1)) for j in js], 12 * g))
    fill = merge(fill, {14: [f'v_add_u32 v{vW2[0]}, {64*1152}, v{vW2[0]}'],
                        18: [f'v_add_u32 v{vW2[1]}, {64*1152}, v{vW2[1]}'],
                        50: [f'v_add_u32 v{vW1[0]}, 128, v{vW1[0]}'],
                        54: [f'v_add_u32 v{vW1[1]}, 128, v{vW1[1]}']})
    bar = {11: tg('w1', (6, 7, 8), it + 1), 23: tg('w2', (0, 1, 2), it), 35: tg('w2', (3, 4, 5), it),
           47: tg('w2', (6, 7, 8), it),
           59: tg('w1', (0, 1, 2), it + 2) if it + 2 <= 8 else None,
           71: tg('w1', (3, 4, 5), it + 2) if it + 2 <= 8 else None}
    extra = {32: [('xw', it)], 40: [('fp', it)]}
    return run_segment(sch, mf, fill, bar, 'B', base_idx, look, waits, extra)

def prologue(g):
    e = g.e
    e('s_cmp_ge_u32 s2, 256')
    e('s_cbranch_scc1 K1_END')
    e('s_load_dwordx8 s[4:11], s[0:1], 0')
    e('s_load_dwordx4 s[12:15], s[0:1], 32')
    e('s_load_dwordx4 s[16:19], s[0:1], 56')
    e('s_load_dwordx4 s[20:23], s[0:1], 80')
    if STAMPS: e('v_mov_b32 v251, 0')
    stamp(g, 0)
    e('s_getpc_b64 s[84:85]')
    g.lab('K1_PC')
    e(f's_and_b32 s{sSP}, s2, 7')
    e(f's_lshr_b32 s{sMT}, s2, 3')
    e(f's_min_u32 s82, s{sMT}, (K1_END-K1_PC)/1024')
    e(f's_lshl_b32 s82, s82, 10')
    e('s_add_u32 s84, s84, s82')
    e('s_addc_u32 s85, s85, 0')
    e(f'v_lshlrev_b32 v{vT0}, 2, v0')
    e(f'global_load_dword v250, v{vT0}, s[84:85]')
    e(f'v_and_b32 v{vLANE}, 63, v0')
    e(f'v_mov_b32 v{SP0+2}, 0')
    e(f'v_mov_b32 v254, 0')
    e(f'v_lshrrev_b32 v{vT0}, 6, v0')
    e(f'v_lshrrev_b32 v2, 3, v{vLANE}')
    e(f'v_readfirstlane_b32 s{sW}, v{vT0}')
    e(f'v_and_b32 v3, 7, v{vLANE}')
    e(f'v_lshrrev_b32 v4, 4, v{vLANE}')
    e(f's_lshr_b32 s{sMI}, s{sW}, 1')
    e(f's_and_b32 s{sX}, s{sW}, 1')
    e(f's_lshl_b32 s{sM1}, s{sW}, 11')
    e(f's_add_u32 s{sM2}, s{sM1}, {W2BASE}')
    e(f's_lshl_b32 s82, s{sW}, 4')
    e(f'v_add_u32 v5, s82, v2')
    e(f'v_xor_b32 v6, v3, v4')
    e(f'v_mul_u32_u24 v7, 1152, v5')
    e(f'v_lshl_add_u32 v{SP0}, v6, 4, v7')
    e(f'v_xor_b32 v6, 4, v6')
    e(f'v_lshl_add_u32 v{SP0+1}, v6, 4, v7')
    e(f'v_add_u32 v{SP0+1}, {8*1152-1024}, v{SP0+1}')
    e(f'v_and_b32 v6, 1, v4')
    e(f'v_lshlrev_b32 v6, 2, v6')
    e(f'v_xor_b32 v6, v3, v6')
    e(f'v_lshlrev_b32 v6, 4, v6')
    e(f's_mul_i32 s82, s{sSP}, {576*1152}')
    e(f'v_add3_u32 v{vW2[0]}, v7, v6, s82')
    e(f'v_add_u32 v{vW2[1]}, {8*1152-1024}, v{vW2[0]}')
    e(f's_mul_i32 s82, s{sSP}, 1152')
    e(f'v_lshlrev_b32 v7, 3, v7')
    e(f'v_add3_u32 v{vW1[0]}, v7, v6, s82')
    e(f'v_add_u32 v{vW1[1]}, {8*9216-1024}, v{vW1[0]}')
    e('s_waitcnt lgkmcnt(0)')
    srd(g, sQ, 4, QBYTES)
    srd(g, sW1, 16, W1BYTES)
    e(f's_mul_i32 s82, s{sMT}, {64*1152}')
    for lam in range(9):
        e(f's_add_u32 m0, s{sM2}, {lam*8192}')
        if lam: e(f's_add_u32 s82, s82, 128')
        else: e('s_nop 0')
        e(f'buffer_load_dwordx4 v{SP0}, {sr(sQ,4)}, s82 offen lds')
        e(f'buffer_load_dwordx4 v{SP0+1}, {sr(sQ,4)}, s82 offen offset:1024 lds')
    for j in range(9):
        e(f's_mov_b32 s{sOFF1+j}, {j*589824}')
    for j in range(9):
        m0, a, b = dma_pair('w1', j)
        e(m0); e(f's_mov_b32 s{sOFF2+j}, {j*128}'); e(a); e(b)
    srd(g, sW2, 18, W2BYTES)
    srd(g, sWS, 22, WS_BYTES)
    srd(g, sK, 6, QBYTES)
    srd(g, sV, 8, QBYTES)
    srd(g, sSK, 10, 576 * 8)
    srd(g, sH, 12, HBYTES)
    KD = SP1
    VD = 16
    WD = 32
    e(f'v_cmp_gt_u32 vcc, 144, v0')
    e(f's_and_saveexec_b64 s[86:87], vcc')
    e(f's_cbranch_execz K1_NOKV0')
    e(f'v_and_b32 v2, 7, v0')
    e(f'v_lshrrev_b32 v3, 3, v0')
    e(f's_lshl_b32 s82, s{sMT}, 6')
    e(f'v_lshl_add_u32 v4, v2, 3, s82')
    e(f's_mul_i32 s83, s{sSP}, 72')
    e(f'v_lshl_add_u32 v5, v3, 2, s83')
    e(f'v_mul_u32_u24 v6, 1152, v4')
    e(f'v_lshl_add_u32 v6, v5, 1, v6')
    e(f'v_subrev_u32 v7, {3*1152}, v6')
    e(f'v_add_u32 v{vT1}, {4*1152}, v6')
    e(f'v_lshlrev_b32 v{vT0}, 3, v5')
    for i in range(3):
        e(f'buffer_load_dwordx2 {vr(KD+2*i,2)}, v7, {sr(sK,4)}, 0 offen offset:{i*1152}')
    for i in range(8):
        b = 6 if i < 4 else vT1
        e(f'buffer_load_dwordx2 {vr(KD+6+2*i,2)}, v{b}, {sr(sK,4)}, 0 offen offset:{(i%4)*1152}')
    for i in range(8):
        b = 6 if i < 4 else vT1
        e(f'buffer_load_dwordx2 {vr(VD+2*i,2)}, v{b}, {sr(sV,4)}, 0 offen offset:{(i%4)*1152}')
    e(f'buffer_load_dwordx4 {vr(WD,4)}, v{vT0}, {sr(sSK,4)}, 0 offen')
    e(f'buffer_load_dwordx4 {vr(WD+4,4)}, v{vT0}, {sr(sSK,4)}, 0 offen offset:16')
    e(f's_movk_i32 s82, {UR_PITCH}')
    e(f'v_mul_lo_u32 v{SP0+2}, v5, s82')
    e(f'v_lshlrev_b32 v4, 1, v4')
    e(f'v_sub_u32 v{SP0+2}, v{SP0+2}, v4')
    e(f'v_add_u32 v{SP0+2}, {WS_UR + 4080}, v{SP0+2}')
    g.lab('K1_NOKV0')
    e('s_mov_b64 exec, s[86:87]')
    e(f'v_lshrrev_b32 v2, 2, v{vLANE}')
    e(f's_lshl_b32 s82, s{sW}, 4')
    e(f'v_add_u32 v2, s82, v2')
    e(f'v_bfe_u32 v3, v2, 1, 3')
    e(f'v_and_b32 v4, 3, v{vLANE}')
    e(f'v_xor_b32 v3, v3, v4')
    e(f'v_lshlrev_b32 v3, 4, v3')
    e(f'v_lshl_add_u32 v3, v2, 7, v3')
    e(f'v_add_u32 v{SP0+4}, {W2BASE}, v3')
    e(f'v_xor_b32 v{SP0+5}, 64, v{SP0+4}')
    e(f'v_add_u32 v{SP0+6}, 32768, v{SP0+4}')
    e(f'v_add_u32 v{SP0+7}, 32768, v{SP0+5}')
    e(f's_cmp_eq_u32 s{sW}, 3')
    e('s_cbranch_scc1 K1_QW3')
    e('s_waitcnt vmcnt(39)')
    e('s_branch K1_QW')
    g.lab('K1_QW3')
    e('s_waitcnt vmcnt(18)')
    g.lab('K1_QW')
    stamp(g, 1)
    e('s_barrier')
    stamp(g, 2)
    X = OACC
    def lnaddr(i):
        lam = i >> 1
        base = (SP0 + 4 + (i & 1)) if lam < 4 else (SP0 + 6 + (i & 1))
        off = (lam if lam < 4 else lam - 4) * 8192
        return base, off
    for i in range(18):
        b, off = lnaddr(i)
        e(f'ds_read_b128 {vr(X+72+4*i,4)}, v{b} offset:{off}')
    e(f'v_mov_b32 v{TMP}, 0x3f803f80')
    for k in range(4): e(f'v_mov_b32 v{TMP+2+k}, 0')
    for i in range(18):
        e(f's_waitcnt lgkmcnt({min(15, 17-i)})') if i >= 2 or True else None
        for k in range(4):
            e(f'v_dot2c_f32_bf16 v{TMP+2+k}, v{X+72+4*i+k}, v{TMP}')
    e('s_nop 3')
    e(f'v_add_f32 v{TMP+2}, v{TMP+2}, v{TMP+3}')
    e(f'v_add_f32 v{TMP+4}, v{TMP+4}, v{TMP+5}')
    e(f'v_add_f32 v{TMP+2}, v{TMP+2}, v{TMP+4}')
    e('s_nop 1')
    e(f'v_add_f32_dpp v{TMP+2}, v{TMP+2}, v{TMP+2} quad_perm:[1,0,3,2] row_mask:0xf bank_mask:0xf')
    e('s_nop 1')
    e(f'v_add_f32_dpp v{TMP+2}, v{TMP+2}, v{TMP+2} quad_perm:[2,3,0,1] row_mask:0xf bank_mask:0xf')
    e(f'v_mul_f32 v{TMP}, {f32(-1.0/576)}, v{TMP+2}')
    e(f'v_mov_b32 v{TMP+1}, v{TMP}')
    for k in range(4): e(f'v_mov_b32 v{TMP+2+k}, 0')
    for i in range(72):
        d = X + 72 + i
        e(f'v_lshlrev_b32 v{X+2*i}, 16, v{d}')
        e(f'v_and_b32 v{X+2*i+1}, 0xffff0000, v{d}')
        e(f'v_pk_add_f32 {vr(X+2*i,2)}, {vr(X+2*i,2)}, {vr(TMP,2)}')
        acc = TMP + 2 + 2 * (i & 1)
        e(f'v_pk_fma_f32 {vr(acc,2)}, {vr(X+2*i,2)}, {vr(X+2*i,2)}, {vr(acc,2)}')
    e(f'v_add_f32 v{TMP+2}, v{TMP+2}, v{TMP+3}')
    e(f'v_add_f32 v{TMP+4}, v{TMP+4}, v{TMP+5}')
    e(f'v_add_f32 v{TMP+2}, v{TMP+2}, v{TMP+4}')
    e('s_nop 1')
    e(f'v_add_f32_dpp v{TMP+2}, v{TMP+2}, v{TMP+2} quad_perm:[1,0,3,2] row_mask:0xf bank_mask:0xf')
    e('s_nop 1')
    e(f'v_add_f32_dpp v{TMP+2}, v{TMP+2}, v{TMP+2} quad_perm:[2,3,0,1] row_mask:0xf bank_mask:0xf')
    e(f'v_mov_b32 v{TMP+3}, {f32(1e-5)}')
    e(f'v_fmac_f32 v{TMP+3}, {f32(1.0/576)}, v{TMP+2}')
    e(f'v_rsq_f32 v{TMP+3}, v{TMP+3}')
    e(f'v_sub_f32 v{TMP+2}, 0, v{TMP}')
    e(f'v_mul_f32 v{TMP+4}, {f32(-LOG2E)}, v{TMP+3}')
    e(f'v_mov_b32 v{TMP+5}, v{TMP+4}')
    for i in range(72):
        e(f'v_pk_mul_f32 {vr(X+2*i,2)}, {vr(X+2*i,2)}, {vr(TMP+4,2)}')
        e(f'v_cvt_pk_bf16_f32 v{X+i}, v{X+2*i}, v{X+2*i+1}')
        if i % 4 == 3:
            b, off = lnaddr(i // 4)
            e(f'ds_write_b128 v{b}, {vr(X+i-3,4)} offset:{off}')
    e(f's_cmp_lg_u32 s{sSP}, 0')
    e('s_cbranch_scc1 K1_NOSTAT')
    e(f'v_and_b32 v2, 3, v{vLANE}')
    e(f'v_cmp_eq_u32 vcc, 0, v2')
    e(f'v_lshrrev_b32 v2, 2, v{vLANE}')
    e(f's_lshl_b32 s82, s{sMT}, 6')
    e(f's_lshl_b32 s83, s{sW}, 4')
    e('s_add_u32 s82, s82, s83')
    e(f'v_add_u32 v2, s82, v2')
    e(f'v_lshlrev_b32 v2, 3, v2')
    e(f'v_add_u32 v2, {WS_STATS}, v2')
    e('s_and_saveexec_b64 s[86:87], vcc')
    e(f'buffer_store_dwordx2 {vr(TMP+2,2)}, v2, {sr(sWS,4)}, 0 offen')
    e('s_mov_b64 exec, s[86:87]')
    g.lab('K1_NOSTAT')
    e(f'v_and_b32 v2, 31, v{vLANE}')
    e(f's_lshl_b32 s82, s{sMI}, 5')
    e(f'v_add_u32 v2, s82, v2')
    e(f'v_bfe_u32 v3, v2, 1, 3')
    e(f'v_lshrrev_b32 v4, 5, v{vLANE}')
    e(f'v_xor_b32 v3, v3, v4')
    e(f'v_lshlrev_b32 v3, 4, v3')
    e(f'v_lshl_add_u32 v3, v2, 7, v3')
    e(f'v_add_u32 v2, {W2BASE}, v3')
    e(f'v_xor_b32 v3, 32, v2')
    e(f'v_xor_b32 v4, 64, v2')
    e(f'v_xor_b32 v5, 96, v2')
    for t in range(4): e(f'v_add_u32 v{6+t}, 32768, v{2+t}')
    e('s_waitcnt lgkmcnt(0)')
    e('s_barrier')
    for k in range(36):
        lam, t = k >> 2, k & 3
        base = (2 + t) if lam < 4 else (6 + t)
        off = (lam if lam < 4 else lam - 4) * 8192
        e(f'ds_read_b128 {ar(XN+4*k,4)}, v{base} offset:{off}')
    stamp(g, 3)
    e('s_waitcnt vmcnt(0)')
    stamp(g, 4)
    e(f'v_cmp_gt_u32 vcc, 144, v0')
    e(f's_and_saveexec_b64 s[86:87], vcc')
    e(f's_cbranch_execz K1_NOKV1')
    KX = OACC
    WX = OACC + 48
    UX = OACC + 64
    for i in range(11):
        e(f'v_lshlrev_b32 v{KX+4*i}, 16, v{KD+2*i}')
        e(f'v_and_b32 v{KX+4*i+1}, 0xffff0000, v{KD+2*i}')
        e(f'v_lshlrev_b32 v{KX+4*i+2}, 16, v{KD+2*i+1}')
        e(f'v_and_b32 v{KX+4*i+3}, 0xffff0000, v{KD+2*i+1}')
    for ch in range(4):
        e(f'v_lshlrev_b32 v{WX+0+ch}, 16, v{WD+2*ch}')
        e(f'v_and_b32 v{WX+4+ch}, 0xffff0000, v{WD+2*ch}')
        e(f'v_lshlrev_b32 v{WX+8+ch}, 16, v{WD+2*ch+1}')
        e(f'v_and_b32 v{WX+12+ch}, 0xffff0000, v{WD+2*ch+1}')
    for r in range(8):
        for hp in range(2):
            u = UX + 4 * r + 2 * hp
            e(f'v_pk_mul_f32 {vr(u,2)}, {vr(KX+4*(r+3)+2*hp,2)}, {vr(WX+2*hp,2)}')
            for j in range(1, 4):
                e(f'v_pk_fma_f32 {vr(u,2)}, {vr(KX+4*(r+3-j)+2*hp,2)}, {vr(WX+4*j+2*hp,2)}, {vr(u,2)}')
        e(f'v_lshlrev_b32 v{TMP}, 16, v{VD+2*r}')
        e(f'v_and_b32 v{TMP+1}, 0xffff0000, v{VD+2*r}')
        e(f'v_lshlrev_b32 v{TMP+2}, 16, v{VD+2*r+1}')
        e(f'v_and_b32 v{TMP+3}, 0xffff0000, v{VD+2*r+1}')
        e(f'v_pk_mul_f32 {vr(UX+4*r,2)}, {vr(UX+4*r,2)}, {vr(TMP,2)}')
        e(f'v_pk_mul_f32 {vr(UX+4*r+2,2)}, {vr(UX+4*r+2,2)}, {vr(TMP+2,2)}')
    PK = OACC + 100
    for ch in range(4):
        for d in range(4):
            e(f'v_cvt_pk_bf16_f32 v{PK+4*ch+d}, v{UX+4*(7-2*d)+ch}, v{UX+4*(6-2*d)+ch}')
    for ch in range(4):
        if ch: e(f'v_add_u32 v{SP0+2}, {UR_PITCH}, v{SP0+2}')
        e(f'buffer_store_dwordx4 {vr(PK+4*ch,4)}, v{SP0+2}, {sr(sWS,4)}, 0 offen sc1')
    e(f'v_and_b32 v2, 7, v0')
    e(f'v_add_u32 v2, s{sMT}, v2')
    e(f'v_cmp_eq_u32 vcc, 0, v2')
    for k in range(4): e(f'v_mov_b32 v{TMP+k}, 0')
    e('s_and_b64 exec, exec, vcc')
    e('s_cbranch_execz K1_NOKV1')
    e(f'v_subrev_u32 v{SP0+2}, {3*UR_PITCH - 16}, v{SP0+2}')
    for ch in range(4):
        e(f'buffer_store_dwordx4 {vr(TMP,4)}, v{SP0+2}, {sr(sWS,4)}, 0 offen sc1')
        if ch < 3: e(f'v_add_u32 v{SP0+2}, {UR_PITCH}, v{SP0+2}')
    g.lab('K1_NOKV1')
    e('s_mov_b64 exec, s[86:87]')
    e(f'v_and_b32 v14, 15, v{vLANE}')
    e(f'v_lshrrev_b32 v15, 5, v{vLANE}')
    e(f'v_bfe_u32 v{TMP}, v{vLANE}, 4, 1')
    e(f'v_lshlrev_b32 v{TMP}, 5, v{TMP}')
    e(f'v_and_b32 v{TMP+1}, 3, v14')
    e(f'v_lshl_add_u32 v{TMP}, v{TMP+1}, 3, v{TMP}')
    e(f's_lshl_b32 s82, s{sX}, 6')
    e(f'v_add_u32 v{TMP}, s82, v{TMP}')
    e(f'v_bfe_u32 v{TMP+1}, v14, 3, 1')
    e(f'v_lshlrev_b32 v{TMP+1}, 6, v{TMP+1}')
    e(f'v_xor_b32 v{TMP}, v{TMP}, v{TMP+1}')
    e(f'v_lshrrev_b32 v{TMP+1}, 2, v14')
    e(f'v_lshl_add_u32 v{TMP+2}, v15, 3, v{TMP+1}')
    e(f'v_lshl_add_u32 v{vA1[0]}, v{TMP+2}, 7, v{TMP}')
    e(f'v_add_u32 v{vA1[1]}, 65536, v{vA1[0]}')
    e(f'v_lshl_add_u32 v{TMP+2}, v15, 2, v{TMP+1}')
    e(f'v_lshl_add_u32 v{TMP+2}, v{TMP+2}, 7, v{TMP}')
    e(f's_lshl_b32 s82, s{sX}, 12')
    e(f's_add_u32 s83, s82, {W2BASE}')
    e(f'v_add_u32 v{vA2O[0]}, s83, v{TMP+2}')
    e(f'v_add_u32 v{vA2O[1]}, 65536, v{vA2O[0]}')
    e(f's_xor_b32 s82, s82, 4096')
    e(f's_add_u32 s83, s82, {W2BASE}')
    e(f'v_add_u32 v{vA2P[0]}, s83, v{TMP+2}')
    e(f'v_add_u32 v{vA2P[1]}, 65536, v{vA2P[0]}')
    e(f'v_lshlrev_b32 v{TMP}, 4, v{vLANE}')
    e(f's_add_u32 s82, s{sM1}, {XCH}')
    e(f'v_add_u32 v{vXW}, s82, v{TMP}')
    e(f'v_xor_b32 v{vXR}, 2048, v{vXW}')

def main_ffn(g):
    e = g.e
    sch = Sched(g)
    stamp(g, 5)
    sch.e('s_waitcnt lgkmcnt(0)')
    sch.e('s_barrier')
    stamp(g, 6)
    for j in range(6):
        m0, a, b = dma_pair('w2', j)
        sch.e(m0); sch.e('s_nop 0'); sch.vm_op(a, ('w2', j, 0)); sch.vm_op(b, ('w2', j, 0))
    sch.e(f'v_add_u32 v{vW1[0]}, 128, v{vW1[0]}')
    sch.e(f'v_add_u32 v{vW1[1]}, 128, v{vW1[1]}')
    mfA = [('G1', i, 0) for i in range(36)]
    prime(sch, mfA, 'A')
    zero = [f'v_mov_b32 v{OACC + k}, 0' for k in range(144)]
    fill = merge({k: list(v) for k, v in spread(zero, 0, 35).items()},
                 dma_period([('w1', j, ('w1', j, 1)) for j in (0, 1, 2)], 12),
                 dma_period([('w1', j, ('w1', j, 1)) for j in (3, 4, 5)], 24))
    run_segment(sch, mfA, fill, {11: None, 23: None, 35: None}, 'A')
    for j in (6, 7, 8):
        m0, a, b = dma_pair('w1', j)
        sch.e(m0); sch.e('s_nop 0'); sch.vm_op(a, ('w1', j, 1)); sch.vm_op(b, ('w1', j, 1))
    sch.e(f'v_add_u32 v{vW1[0]}, 128, v{vW1[0]}')
    sch.e(f'v_add_u32 v{vW1[1]}, 128, v{vW1[1]}')
    sch.e('s_nop 7')
    for op in silu_ops(0)[:SILU_K]: sch.e(op)
    stamp(g, 7)
    sch.e('s_waitcnt vmcnt(0)')
    sch.e('s_barrier')
    stamp(g, 8)
    e(f's_cmp_lg_u32 s{sW}, 0')
    e('s_cbranch_scc1 K1_NOSIG')
    e(f's_lshl_b32 s82, s{sSP}, 2')
    e(f'v_mov_b32 v{vT0}, s82')
    e(f'v_mov_b32 v{vT1}, 1')
    e('s_mov_b64 exec, 1')
    e(f'global_atomic_add v{vT0}, v{vT1}, s[20:21]')
    e('s_mov_b64 exec, -1')
    g.lab('K1_NOSIG')
    mf0 = [('G1', i, 1) for i in range(36)]
    prime(sch, mf0, 'B')
    sch.vm = []
    import copy
    sim = Sched(G()); sim.lds = list(sch.lds); sim.vm = []
    got = []
    texts = []
    for it in range(8):
        sim.g = G()
        got.append(iteration(sim, it, 72 * it, it == 7))
        texts.append(sim.g.text())
    waits = [None, None]
    for par in (0, 1):
        w = {}
        for it in (par, par + 2, par + 4):
            for k, v in got[it].items(): w[k] = min(w.get(k, 63), v)
        waits[par] = w
    print('vm waits par0', waits[0], 'par1', waits[1], 'it6', got[6], 'it7', got[7])
    e(f's_mov_b32 s{sCNT}, 0')
    g.raw('.p2align 3')
    g.lab('K1_LOOP')
    bodies = []
    for it in range(6):
        if it < 2:
            iteration(sch, it, 72 * it, False, waits[it % 2])
        else:
            gg = G(); old = sch.g; sch.g = gg
            iteration(sch, it, 72 * it, False, waits[it % 2])
            sch.g = old
            bodies.append(gg.text())
        if it == 1:
            e(f's_add_u32 s{sCNT}, s{sCNT}, 1')
            e(f's_cmp_lt_u32 s{sCNT}, 3')
            e('s_cbranch_scc1 K1_LOOP')
    assert bodies[0] == bodies[2] and bodies[1] == bodies[3]
    if STAMPS:
        stamp(g, 9)
    iteration(sch, 6, 72 * 6, False)
    iteration(sch, 7, 72 * 7, True)
    stamp(g, 10)
    poll_issue(g)
    for j in (6, 7, 8):
        m0, a, b = dma_pair('w2', j)
        sch.e(m0); sch.e('s_nop 0'); sch.vm_op(a, ('w2', j, 8)); sch.vm_op(b, ('w2', j, 8))
    for op in silu_ops(0)[SILU_K:]: sch.e(op)
    sch.lds_op(f'ds_write_b128 v{vXW}, {vr(FO[0],4)}', ('xw', 8))
    sch.lds_op(f'ds_write_b128 v{vXW}, {vr(FO[0]+4,4)} offset:1024', ('xw', 8))
    w = sch.need_vm(set(tg('w2', range(6), 8)))
    sch.e(f's_waitcnt vmcnt({w}) lgkmcnt(0)')
    sch.e('s_barrier')
    sch.lds_op(f'ds_read_b128 {ar(FP,4)}, v{vXR}', ('fp', 8))
    sch.lds_op(f'ds_read_b128 {ar(FP+4,4)}, v{vXR} offset:1024', ('fp', 8))
    mfC = [('G2', i, 0) for i in range(36)]
    prime(sch, mfC, 'C')
    run_segment(sch, mfC, {}, {11: tg('w2', (6, 7, 8), 8)}, 'C', extra_need={4: [('fp', 8)]})
    stamp(g, 11)
    return sch

def part_store(g):
    e = g.e
    e(f's_lshl_b32 s82, s{sMT}, 1')
    e(f's_add_u32 s82, s82, s{sMI}')
    e(f's_mul_i32 s82, s82, 18')
    e(f's_add_u32 s82, s82, s{sX}')
    e(f's_lshl_b32 s82, s82, 3')
    e(f's_add_u32 s82, s82, s{sSP}')
    e(f's_lshl_b32 s82, s82, 11')
    e(f'v_lshlrev_b32 v{vT0}, 4, v{vLANE}')
    e('s_nop 7')
    e('s_nop 7')
    for j in range(9):
        t = TMP if j % 2 == 0 else SP0
        for k in range(8):
            e(f'v_cvt_pk_bf16_f32 v{t+k}, v{OACC+16*j+2*k}, v{OACC+16*j+2*k+1}')
        e(f'buffer_store_dwordx4 {vr(t,4)}, v{vT0}, {sr(sWS,4)}, s82 offen sc1')
        e(f'buffer_store_dwordx4 {vr(t+4,4)}, v{vT0}, {sr(sWS,4)}, s82 offen offset:1024 sc1')
        if j < 8: e(f's_add_u32 s82, s82, {2*8*2048}')

CONV_WAVE = 32000
CU0 = 16640; CU1 = 16640 + 7680
vPOLL = SP1 + 31
def poll_issue(g):
    e = g.e
    e('s_cmp_ge_u32 s2, 144')
    e('s_cbranch_scc1 K1_NOPOLL')
    e(f's_cmp_lg_u32 s{sW}, 0')
    e('s_cbranch_scc1 K1_NOPOLL')
    e('s_mul_i32 s82, s2, 3641')
    e('s_lshr_b32 s82, s82, 16')
    e('s_lshl_b32 s88, s82, 2')
    e(f'v_mov_b32 v{vPOLL-1}, s88')
    e(f'global_load_dword v{vPOLL}, v{vPOLL-1}, s[20:21] sc1')
    g.lab('K1_NOPOLL')

def conv(g):
    e = g.e
    A0 = 0; B0 = 16; SET = 48
    CACC = 16
    UD = SP1 - 32
    e('s_cmp_ge_u32 s2, 144')
    e('s_cbranch_scc1 K1_PART_ONLY')
    e(f's_cmp_lg_u32 s{sW}, 0')
    e('s_cbranch_scc1 K1_POLLED')
    e('s_mov_b32 s83, 0')
    g.lab('K1_POLL')
    e('s_waitcnt vmcnt(0)')
    e(f'v_readfirstlane_b32 s82, v{vPOLL}')
    e('s_cmp_ge_u32 s82, 32')
    e('s_cbranch_scc1 K1_POLLED')
    e('s_add_u32 s83, s83, 1')
    e('s_cmp_ge_u32 s83, 0x40000')
    e('s_cbranch_scc1 K1_POLLED')
    e('s_sleep 8')
    e(f'global_load_dword v{vPOLL}, v{vPOLL-1}, s[20:21] sc1')
    e('s_branch K1_POLL')
    g.lab('K1_POLLED')
    e('s_barrier')
    e('s_lshl_b32 s88, s2, 2')
    e(f's_add_u32 s88, s88, s{sW}')
    e(f's_mul_i32 s89, s{sW}, {CONV_WAVE}')
    e('s_lshl_b32 s82, s88, 1')
    e('s_and_b32 s83, s82, 0xfffffffc')
    e('s_load_dword s90, s[14:15], s83')
    UL = 96
    e(f's_mul_i32 s82, s88, {UR_PITCH}')
    e(f's_add_u32 s82, s82, {WS_UR}')
    e(f'v_lshlrev_b32 v2, 4, v{vLANE}')
    e(f'v_add_u32 v3, 2, v2')
    for b in range(4):
        e(f'buffer_load_dwordx4 {ar(UL+4*b,4)}, v2, {sr(sWS,4)}, s82 offen offset:{b*1024} sc1')
    for b in range(4):
        e(f'buffer_load_dwordx4 {ar(UL+16+4*b,4)}, v3, {sr(sWS,4)}, s82 offen offset:{b*1024} sc1')
    e(f'v_lshrrev_b32 v4, 2, v{vLANE}')
    e(f'v_and_b32 v5, 3, v{vLANE}')
    e(f'v_add_u32 v4, v4, v5')
    e(f'v_subrev_u32 v4, 16, v4')
    e(f'v_cmp_gt_i32 vcc, 0, v4')
    e(f'v_lshlrev_b32 v4, 2, v4')
    e(f's_lshl_b32 s83, s88, 12')
    e(f'v_add_u32 v4, s83, v4')
    e(f'v_mov_b32 v5, 0x80000000')
    e(f'v_cndmask_b32 v4, v4, v5, vcc')
    e(f'v_lshlrev_b32 v5, 2, v{vLANE}')
    e(f'v_add_u32 v5, s83, v5')
    e('s_mov_b32 m0, s89')
    e('s_mov_b32 s91, 0')
    e(f'buffer_load_dword v4, {sr(sH,4)}, 0 offen lds')
    for b in range(16):
        e(f's_add_u32 m0, s89, {256 + 1024*b}')
        if b: e(f's_add_u32 s91, s91, 256')
        else: e('s_nop 0')
        e(f'buffer_load_dwordx4 v5, {sr(sH,4)}, s91 offen lds')
    part_store(g)
    e(f'v_lshrrev_b32 v2, 2, v{vLANE}')
    e(f'v_mul_u32_u24 v2, 96, v2')
    e(f'v_and_b32 v3, 3, v{vLANE}')
    e(f'v_lshl_add_u32 v2, v3, 4, v2')
    e(f'v_add_u32 v2, s89, v2')
    for k in range(4): e(f'v_mov_b32 v{8+k}, 0')
    for k in range(32): e(f'v_mov_b32 v{CACC+k}, 0')
    stamp(g, 12)
    e('s_waitcnt vmcnt(18) lgkmcnt(0)')
    stamp(g, 13)
    for b in range(4):
        e(f'ds_write_b128 v2, {ar(UL+4*b,4)} offset:{CU1 + b*1536}')
        e(f'ds_write_b128 v2, {ar(UL+16+4*b,4)} offset:{CU0 + b*1536}')
    e(f'ds_write_b128 v2, {vr(8,4)} offset:{CU1 + 4*1536}')
    e(f'ds_write_b128 v2, {vr(8,4)} offset:{CU0 + 4*1536}')
    e('s_lshr_b32 s82, s90, 16')
    e('s_and_b32 s83, s90, 0xffff')
    e('s_bitcmp1_b32 s88, 0')
    e('s_cselect_b32 s90, s82, s83')
    e('s_lshl_b32 s90, s90, 16')
    e(f'v_and_b32 v4, 15, v{vLANE}')
    e(f'v_lshrrev_b32 v5, 4, v{vLANE}')
    e(f'v_lshlrev_b32 v6, 4, v4')
    e(f'v_lshl_add_u32 v6, v5, 6, v6')
    e(f's_add_u32 s82, s89, 16')
    e(f'v_add_u32 v6, s82, v6')
    e(f'v_sub_u32 v7, 15, v4')
    e(f'v_mul_u32_u24 v7, 96, v7')
    e(f'v_lshl_add_u32 v7, v5, 4, v7')
    e(f's_add_u32 s82, s89, {CU0}')
    e(f'v_add_u32 v7, s82, v7')
    e('s_waitcnt lgkmcnt(0)')
    def loads(st):
        for t in range(4):
            e(f'ds_read_b128 {ar(st*SET + A0 + 4*t, 4)}, v6 offset:{4096*t}')
        for dl in range(4):
            for rho in range(2):
                e(f'ds_read_b128 {ar(st*SET + B0 + 8*dl + 4*rho, 4)}, v7 offset:{(3-dl)*16*96 + rho*7680}')
        e('v_add_u32 v6, 256, v6')
        e('v_add_u32 v7, 96, v7')
    def mfmas(st):
        for t in range(4):
            for tau in range(t, 4):
                for rho in range(2):
                    acc = vr(CACC + 8*tau + 4*rho, 4)
                    e(f'v_mfma_f32_16x16x32_bf16 {acc}, {ar(st*SET + A0 + 4*t, 4)}, {ar(st*SET + B0 + 8*(tau-t) + 4*rho, 4)}, {acc}')
    loads(0)
    e('s_mov_b32 s91, 0')
    g.lab('K1_CONV')
    loads(1)
    e('s_waitcnt lgkmcnt(12)')
    mfmas(0)
    loads(0)
    e('s_waitcnt lgkmcnt(12)')
    mfmas(1)
    e('s_add_u32 s91, s91, 1')
    e('s_cmp_lt_u32 s91, 8')
    e('s_cbranch_scc1 K1_CONV')
    e('s_waitcnt lgkmcnt(0)')
    stamp(g, 14)
    e(f'v_sub_u32 v2, 63, v4')
    e(f'v_mul_u32_u24 v2, 96, v2')
    e(f'v_lshlrev_b32 v3, 4, v5')
    e(f'v_sub_u32 v2, v2, v3')
    e(f's_add_u32 s82, s89, {CU1 + 48 - 48*96}')
    e(f'v_add_u32 v2, s82, v2')
    for tau in range(4):
        e(f'ds_read_b128 {vr(48+4*tau,4)}, v2 offset:{(3-tau)*1536}')
    e(f'v_lshlrev_b32 v3, 6, v4')
    e(f'v_lshl_add_u32 v3, v5, 4, v3')
    e(f's_lshl_b32 s82, s88, 12')
    e(f's_add_u32 s82, s82, {WS_Y}')
    e('s_waitcnt lgkmcnt(0)')
    for tau in range(4):
        t = 64 + 8 * (tau % 2)
        for r in range(4):
            dw = 48 + 4 * tau + (3 - r)
            e(f'v_and_b32 v8, 0xffff0000, v{dw}')
            e(f'v_lshlrev_b32 v9, 16, v{dw}')
            e(f'v_fma_f32 v8, v8, s90, v{CACC + 8*tau + r}')
            e(f'v_fma_f32 v9, v9, s90, v{CACC + 8*tau + 4 + r}')
            e(f'v_cvt_pk_bf16_f32 v{t+r}, v8, v9')
        e(f'buffer_store_dwordx4 {vr(t,4)}, v3, {sr(sWS,4)}, s82 offen offset:{1024*tau}')
    e('s_branch K1_FIN')
    g.lab('K1_PART_ONLY')
    part_store(g)
    g.lab('K1_FIN')
    if STAMPS:
        stamp(g, 15)
        e('s_waitcnt vmcnt(0)')
        stamp(g, 16)
        stamp_out(g)

def build_k1():
    g = G()
    g.raw('.globl ffn_conv_kernel\n.p2align 8\n.type ffn_conv_kernel,@function\nffn_conv_kernel:')
    prologue(g)
    sch = main_ffn_wrap(g)
    conv(g)
    g.lab('K1_END')
    g.e('s_endpgm')
    return g

def main_ffn_wrap(g):
    return main_ffn(g)
```

```python
from common import *

K2_LDS = 8192 + 64 * 272
ZB = 8192
def build_k2():
    g = G(); e = g.e
    g.raw('.globl final_kernel\n.p2align 8\n.type final_kernel,@function\nfinal_kernel:')
    e('s_cmp_ge_u32 s2, 288')
    e('s_cbranch_scc1 K2_END')
    e('s_load_dwordx2 s[4:5], s[0:1], 0')
    e('s_load_dwordx2 s[6:7], s[0:1], 72')
    e('s_load_dwordx2 s[8:9], s[0:1], 88')
    e('s_mul_i32 s20, s2, 7282')
    e('s_lshr_b32 s20, s20, 16')
    e('s_mul_i32 s21, s20, 9')
    e('s_sub_u32 s21, s2, s21')
    e('v_and_b32 v1, 63, v0')
    e('v_lshrrev_b32 v2, 6, v0')
    e('v_lshlrev_b32 v3, 4, v1')
    e('v_readfirstlane_b32 s22, v2')
    e('s_lshr_b32 s23, s22, 1')
    e('s_and_b32 s24, s22, 1')
    e('s_lshl_b32 s25, s20, 1')
    e('s_add_u32 s25, s25, s23')
    e('s_mul_i32 s25, s25, 18')
    e('s_lshl_b32 s26, s21, 1')
    e('s_add_u32 s25, s25, s26')
    e('s_add_u32 s25, s25, s24')
    e('s_lshl_b32 s25, s25, 14')
    e('s_waitcnt lgkmcnt(0)')
    srd(g, 12, 8, WS_BYTES)
    srd(g, 16, 4, QBYTES)
    srd(g, 28, 6, QBYTES)
    P = 16
    for sp in range(8):
        e(f'buffer_load_dwordx4 {vr(P+8*sp,4)}, v3, {sr(12,4)}, s25 offen')
        e(f'buffer_load_dwordx4 {vr(P+8*sp+4,4)}, v3, {sr(12,4)}, s25 offen offset:1024')
        if sp < 7: e('s_add_u32 s25, s25, 2048')
    e('v_lshrrev_b32 v4, 3, v1')
    e('v_and_b32 v5, 7, v1')
    e('v_bfe_u32 v6, v1, 4, 1')
    e('v_lshlrev_b32 v6, 2, v6')
    e('v_xor_b32 v5, v5, v6')
    e('v_lshlrev_b32 v5, 4, v5')
    e('s_lshl_b32 s26, s22, 4')
    e('s_lshl_b32 s27, s21, 6')
    e('s_add_u32 s26, s26, s27')
    e('v_add_u32 v4, s26, v4')
    e('v_lshl_add_u32 v4, v4, 12, v5')
    e(f'v_add_u32 v5, {8*4096-1024}, v4')
    e('s_lshl_b32 s26, s20, 7')
    e(f's_add_u32 s26, s26, {WS_Y}')
    e('s_lshl_b32 s27, s22, 11')
    e('s_mov_b32 m0, s27')
    e('s_nop 0')
    e(f'buffer_load_dwordx4 v4, {sr(12,4)}, s26 offen lds')
    e(f'buffer_load_dwordx4 v5, {sr(12,4)}, s26 offen offset:1024 lds')
    e('v_lshrrev_b32 v6, 2, v0')
    e('s_lshl_b32 s26, s20, 6')
    e('v_add_u32 v6, s26, v6')
    e('v_and_b32 v7, 3, v0')
    e('v_mul_u32_u24 v8, 1152, v6')
    e('v_lshl_add_u32 v8, v7, 5, v8')
    e('s_lshl_b32 s27, s21, 7')
    e('v_add_u32 v8, s27, v8')
    e(f'buffer_load_dwordx4 v[80:83], v8, {sr(16,4)}, 0 offen')
    e(f'buffer_load_dwordx4 v[84:87], v8, {sr(16,4)}, 0 offen offset:16')
    e('v_lshlrev_b32 v9, 3, v6')
    e(f'v_add_u32 v9, {WS_STATS}, v9')
    e(f'buffer_load_dwordx2 v[88:89], v9, {sr(12,4)}, 0 offen')
    ACC = 96
    for sp in range(8):
        e(f's_waitcnt vmcnt({2*(7-sp) + 5})')
        for k in range(8):
            d = P + 8 * sp + k
            if sp == 0:
                e(f'v_lshlrev_b32 v{ACC+2*k}, 16, v{d}')
                e(f'v_and_b32 v{ACC+2*k+1}, 0xffff0000, v{d}')
            else:
                e(f'v_lshlrev_b32 v10, 16, v{d}')
                e(f'v_and_b32 v11, 0xffff0000, v{d}')
                e(f'v_pk_add_f32 {vr(ACC+2*k,2)}, {vr(ACC+2*k,2)}, v[10:11]')
    for r in range(16):
        e(f'v_exp_f32 v{112+r}, v{ACC+r}')
    for r in range(16):
        e(f'v_add_f32 v{112+r}, 1.0, v{112+r}')
    for r in range(16):
        e(f'v_rcp_f32 v{112+r}, v{112+r}')
    for r in range(16):
        e(f'v_mul_f32 v{ACC+r}, {f32(-0.6931471805599453)}, v{ACC+r}')
    for r in range(16):
        e(f'v_mul_f32 v{ACC+r}, v{ACC+r}, v{112+r}')
    e('v_and_b32 v10, 15, v1')
    e('v_lshrrev_b32 v11, 5, v1')
    e('v_bfe_u32 v12, v1, 4, 1')
    e('v_lshlrev_b32 v12, 5, v12')
    e('v_and_b32 v13, 3, v10')
    e('v_lshl_add_u32 v12, v13, 3, v12')
    e('s_lshl_b32 s26, s23, 6')
    e('v_add_u32 v12, s26, v12')
    e('v_bfe_u32 v13, v10, 3, 1')
    e('v_lshlrev_b32 v13, 6, v13')
    e('v_xor_b32 v12, v12, v13')
    e('v_lshrrev_b32 v13, 2, v10')
    e('v_lshl_add_u32 v13, v11, 2, v13')
    e('s_lshl_b32 s26, s24, 5')
    e('v_add_u32 v13, s26, v13')
    e('v_lshl_add_u32 v12, v13, 7, v12')
    e('s_waitcnt vmcnt(3)')
    e('s_barrier')
    for rho in range(4):
        e(f'ds_read_b64_tr_b16 {vr(16+2*rho,2)}, v12 offset:{rho*1024}')
    e('v_and_b32 v13, 31, v1')
    e('s_lshl_b32 s26, s23, 5')
    e('v_add_u32 v13, s26, v13')
    e('v_mul_u32_u24 v13, 272, v13')
    e('v_lshl_add_u32 v13, v11, 4, v13')
    e('s_lshl_b32 s26, s24, 7')
    e(f's_add_u32 s26, s26, {ZB}')
    e('v_add_u32 v13, s26, v13')
    e('s_waitcnt lgkmcnt(0)')
    for rho in range(4):
        for k in range(2):
            d = 16 + 2 * rho + k
            e(f'v_lshlrev_b32 v10, 16, v{d}')
            e(f'v_and_b32 v11, 0xffff0000, v{d}')
            e(f'v_mul_f32 v{ACC+4*rho+2*k}, v{ACC+4*rho+2*k}, v10')
            e(f'v_mul_f32 v{ACC+4*rho+2*k+1}, v{ACC+4*rho+2*k+1}, v11')
        e(f'ds_write_b128 v13, {vr(ACC+4*rho,4)} offset:{rho*32}')
    e('v_lshrrev_b32 v6, 2, v0')
    e('v_mul_u32_u24 v6, 272, v6')
    e('v_lshl_add_u32 v6, v7, 6, v6')
    e('s_waitcnt vmcnt(0) lgkmcnt(0)')
    e('s_barrier')
    for k in range(4):
        e(f'ds_read_b128 {vr(16+4*k,4)}, v6 offset:{ZB + 16*k}')
    e('v_sub_f32 v88, 0, v88')
    e('s_waitcnt lgkmcnt(0)')
    for k in range(8):
        d = 80 + k
        e(f'v_lshlrev_b32 v10, 16, v{d}')
        e(f'v_and_b32 v11, 0xffff0000, v{d}')
        e(f'v_add_f32 v12, v10, v88')
        e(f'v_add_f32 v13, v11, v88')
        e(f'v_mul_f32 v12, v12, v89')
        e(f'v_mul_f32 v13, v13, v89')
        e(f'v_fmac_f32 v10, v12, v{16+2*k}')
        e(f'v_fmac_f32 v11, v13, v{16+2*k+1}')
        e(f'v_cvt_pk_bf16_f32 v{32+k}, v10, v11')
    e(f'buffer_store_dwordx4 v[32:35], v8, {sr(28,4)}, 0 offen')
    e(f'buffer_store_dwordx4 v[36:39], v8, {sr(28,4)}, 0 offen offset:16')
    g.lab('K2_END')
    e('s_endpgm')
    return g
```

```python
import sys
from common import *
import k1, k2

HEAD = open('recurrent_scan__ssm_conv_h3__dense_activation_silu__prompt.s.ref').read().split('\n')
hdr = [l for l in HEAD if l.startswith(';') and '@launch' not in l and 'Override' not in l and 'grid=ceil' not in l]
def build():
    out = '\n'.join(hdr) + '\n'
    out += f'; @launch kernel=ffn_conv_kernel grid=(256,1,1) block=(256,1,1) lds={k1.K1_LDS}\n'
    out += f'; @launch kernel=final_kernel grid=(288,1,1) block=(256,1,1) lds={k2.K2_LDS}\n'
    out += '.amdgcn_target "amdgcn-amd-amdhsa--gfx950"\n.text\n'
    out += k1.build_k1().text()
    out += k2.build_k2().text()
    out += kdesc('ffn_conv_kernel', 512, 256)
    out += kdesc('final_kernel', 128, 128, 40)
    return out
if __name__ == '__main__':
    dst = sys.argv[1] if len(sys.argv) > 1 else 'recurrent_scan__ssm_conv_h3__dense_activation_silu__prompt.s'
    open(dst, 'w').write(build())
    print('written', dst)
```

```python
from common import *
import os

W1BASE = 0
W2BASE = 73728
XCH = 147456
K1_LDS = 155648
KVB = 73728 + 49152
KV_K = KVB
KV_V = KVB + 67 * 144 + 16 * 0
vTID, vLANE = 0, 1
vA1 = (2, 3); vA2O = (4, 5); vA2P = (6, 7)
vXW, vXR = 8, 9
vW1 = (10, 11); vW2 = (12, 13)
vT0, vT1 = 14, 15
HACC = (16, 32)
FO = (48, 56)
TMP = 64
SP0 = 72
OACC = 80
SP1 = 224
XN = 0
ARING = 144
FP = 176
NB = 8; LA = 7
sQ, sW1, sW2, sWS, sK, sV, sSK, sH = 24, 28, 32, 36, 40, 44, 48, 52
sOFF1, sOFF2 = 56, 65
sW, sMI, sX, sMT, sSP = 74, 75, 76, 77, 78
sM1, sM2, sCNT = 79, 80, 81
sC1, sC2, sOT = 94, 95, 96
vW1B = (224, 225); vW2B = (226, 227)
sMASK = 98
sCH, sCB, sD = 88, 89, 90

STAMPS = os.environ.get('STAMPS', '0') == '1'
WS_STAMP = 0x1D00000
EXP = set(os.environ.get('EXP', '').split(','))
def stamp(g, k):
    if not STAMPS: return
    g.e('s_memtime s[92:93]')
    g.e('s_waitcnt lgkmcnt(0)')
    g.e(f'v_writelane_b32 v251, s92, {k}')
    g.e('s_memrealtime s[92:93]')
    g.e('s_waitcnt lgkmcnt(0)')
    g.e(f'v_writelane_b32 v251, s92, {k+32}')
def stamp_out(g):
    if not STAMPS: return
    g.e(f's_lshl_b32 s92, s2, 2')
    g.e(f's_add_u32 s92, s92, s{sW}')
    g.e(f's_lshl_b32 s92, s92, 8')
    g.e(f's_add_u32 s92, s92, {WS_STAMP}')
    g.e(f'v_lshlrev_b32 v250, 2, v{vLANE}')
    g.e(f'buffer_store_dword v251, v250, {sr(sWS,4)}, s92 offen')

class Sched:
    def __init__(s, g):
        s.g = g; s.lds = []; s.vm = []; s.inloop = False
    def e(s, txt):
        if txt.startswith('LABEL '):
            s.g.lab(txt[6:]); return
        if s.inloop:
            if 'nodma' in EXP and ' lds' in txt and txt.startswith('buffer_load'): return
            if 'nobar' in EXP and txt.startswith('s_barrier'): return
            if 'nosilu' in EXP and txt.split()[0] in ('v_exp_f32', 'v_rcp_f32', 'v_add_f32', 'v_mul_f32', 'v_cvt_pk_bf16_f32'): return
            if 'notr' in EXP and txt.startswith('ds_read_b64_tr'): return
            if 'novmwait' in EXP and txt.startswith('s_waitcnt vmcnt'): return
        s.g.e(txt)
    def lds_op(s, txt, tag): s.e(txt); s.lds.append(tag)
    def vm_op(s, txt, tag): s.e(txt); s.vm.append(tag)
    def need(s, q, tags):
        idx = -1
        for i, t in enumerate(q):
            if t in tags: idx = i
        return len(q) - 1 - idx if idx >= 0 else None
    def need_lds(s, tags): return s.need(s.lds, tags)
    def need_vm(s, tags): return s.need(s.vm, tags)
    def item(s, f):
        if isinstance(f, str): s.e(f)
        elif f[0] == 's': s.e(f[1])
        elif f[0] == 'grp':
            for t in f[1]: s.e(t)
        elif f[0] == 'vm': s.vm_op(f[1], f[2])
        elif f[0] == 'lds': s.lds_op(f[1], f[2])

def cost(f):
    if isinstance(f, str): t = f
    elif f[0] == 'grp': return sum(cost(x) for x in f[1])
    else: t = f[1]
    op = t.split()[0]
    if op.startswith(('v_exp', 'v_rcp', 'v_rsq', 'v_log')): return 8
    if op.startswith('buffer_'): return 6
    return 4

class Plan:
    def __init__(s, n, base, budget):
        s.n = n; s.fill = {i: [] for i in range(n)}; s.c = list(base); s.budget = budget
    def put(s, slot, f):
        s.fill[slot].append(f); s.c[slot] += cost(f)
    def spread(s, items, first, last, mind=None):
        n = last - first + 1
        cur = first
        for k, f in enumerate(items):
            ideal = first + (k * n) // len(items)
            sl = max(cur, ideal)
            while sl < last and s.c[sl] + cost(f) > s.budget: sl += 1
            s.put(sl, f); cur = sl

def g2_order():
    o = [(0,'o',0),(0,'o',1),(1,'o',0),(1,'o',1),(0,'p',0),(0,'p',1),(1,'p',0),(1,'p',1)]
    for j in range(2, 9): o += [(j,'o',0),(j,'o',1),(j,'p',0),(j,'p',1)]
    return o
G2ORD = g2_order()

def frag_reads(kind, i, buf):
    d = ARING + 4 * buf
    if kind == 'G1':
        j, kp = i // 4, i % 4
        areg = vA1[1] if j == 8 else vA1[0]
        off = (j % 8) * 8192 + kp * 2048
        return [f'ds_read_b64_tr_b16 {ar(d,2)}, v{areg} offset:{off}',
                f'ds_read_b64_tr_b16 {ar(d+2,2)}, v{areg} offset:{off+512}']
    j, who, h = G2ORD[i]
    regs = vA2O if who == 'o' else vA2P
    areg = regs[1] if j == 8 else regs[0]
    off = (j % 8) * 8192 + h * 2048
    return [f'ds_read_b64_tr_b16 {ar(d,2)}, v{areg} offset:{off}',
            f'ds_read_b64_tr_b16 {ar(d+2,2)}, v{areg} offset:{off+1024}']

def mfma_text(kind, i, buf, par, first=False):
    a = ar(ARING + 4 * buf, 4)
    if kind == 'G1':
        h = vr(HACC[par], 16)
        return f'v_mfma_f32_32x32x16_bf16 {h}, {a}, {ar(XN + 4*i, 4)}, {"0" if i == 0 else h}'
    j, who, h = G2ORD[i]
    o = vr(OACC + 16 * j, 16)
    b = vr(FO[par] + 4 * h, 4) if who == 'o' else ar(FP + 4 * h, 4)
    c = '0' if (first and who == 'o' and h == 0) else o
    return f'v_mfma_f32_32x32x16_bf16 {o}, {a}, {b}, {c}'

def silu_ops(par):
    ops = []
    H = HACC[par]
    for p in range(8):
        t0 = TMP + 2 * (p % 4); t1 = t0 + 1
        r0, r1 = H + 2 * p, H + 2 * p + 1
        ops += [f'v_exp_f32 v{t0}, v{r0}', f'v_exp_f32 v{t1}, v{r1}',
                f'v_add_f32 v{t0}, 1.0, v{t0}', f'v_add_f32 v{t1}, 1.0, v{t1}',
                f'v_rcp_f32 v{t0}, v{t0}', f'v_rcp_f32 v{t1}, v{t1}',
                f'v_mul_f32 v{t0}, v{t0}, v{r0}', f'v_mul_f32 v{t1}, v{t1}, v{r1}',
                f'v_cvt_pk_bf16_f32 v{FO[par] + p}, v{t0}, v{t1}']
    return ops

def dma_pair(region, j):
    if region == 'w1':
        return (f's_add_u32 m0, s{sM1}, {j*8192}',
                f'buffer_load_dwordx4 v{vW1[0]}, {sr(sW1,4)}, s{sOFF1+j} offen lds',
                f'buffer_load_dwordx4 v{vW1[1]}, {sr(sW1,4)}, s{sOFF1+j} offen offset:1024 lds')
    return (f's_add_u32 m0, s{sM2}, {j*8192}',
            f'buffer_load_dwordx4 v{vW2[0]}, {sr(sW2,4)}, s{sOFF2+j} offen lds',
            f'buffer_load_dwordx4 v{vW2[1]}, {sr(sW2,4)}, s{sOFF2+j} offen offset:1024 lds')

def dma_now(sch, region, js, chunk):
    for j in js:
        m0, a, b = dma_pair(region, j)
        sch.e(m0); sch.e('s_nop 0'); sch.vm_op(a, (region, j, chunk)); sch.vm_op(b, (region, j, chunk))

def dma_period(plan, region, js, chunk, base):
    for n, j in enumerate(js):
        m0, a, b = dma_pair(region, j)
        s0 = base + 4 * n
        plan.put(s0, ('s', m0, None))
        plan.put(s0 + 1, ('vm', a, (region, j, chunk)))
        plan.put(s0 + 3, ('vm', b, (region, j, chunk)))

def advance(region):
    step = 128 if region == 'w1' else 73728
    regs = vW1 if region == 'w1' else vW2
    return [f'v_add_u32 v{r}, {step}, v{r}' for r in regs]

def run_segment(sch, mf, plan, barriers, seg, base_idx=0, look=None, waits=None, extra_need=None, first=False, post=None, after=None):
    got = {}
    allm = list(mf) + list(look or [])
    for n, (kind, i, par) in enumerate(mf):
        gi = base_idx + n
        if gi % 4 == 0:
            tags = {('f', seg, gi + k) for k in range(4)}
            for k in range(4):
                if extra_need and (n + k) in extra_need: tags |= set(extra_need[n + k])
            w = sch.need_lds(tags)
            assert w is not None and w <= 15, (w, gi)
            sch.e(f's_waitcnt lgkmcnt({w})')
        sch.e(mfma_text(kind, i, gi % NB, par, first))
        if n + LA < len(allm):
            k2, i2, p2 = allm[n + LA]
            for t in frag_reads(k2, i2, (gi + LA) % NB):
                sch.lds_op(t, ('f', seg, gi + LA))
        for f in plan.fill.get(n, []): sch.item(f)
        if n in barriers:
            req = barriers[n]
            if post and n in post: post[n]()
            if req is not None:
                w = sch.need_vm(set(req))
                if w is None: w = 63
                got[n] = w
                if waits is not None and n in waits: w = waits[n]
                if w < 63: sch.e(f's_waitcnt vmcnt({w})')
            sch.e('s_barrier')
            if after and n in after: after[n]()
    return got

def prime(sch, mf, seg):
    for n in range(LA):
        k, i, p = mf[n]
        for t in frag_reads(k, i, n % NB): sch.lds_op(t, ('f', seg, n))

def tg(region, js, chunk): return [(region, j, chunk) for j in js]

def base_costs(n, nreads, bars):
    c = [8 if k < nreads else 0 for k in range(n)]
    for k in range(n):
        if (k + 1) % 4 == 0: c[k] += 4
        if k in bars: c[k] += 8
    return c

SILU_K = 40
JT = int(os.environ.get('JT', '13'))
def iteration(sch, it, base_idx, last_of_seg, waits=None, first=False, tail=None):
    p2 = it % 2; p1 = (it + 1) % 2
    mf = [('G1', i, p1) for i in range(36)] + [('G2', i, p2) for i in range(36)]
    look = None if last_of_seg else [('G1', i, p2) for i in range(LA)]
    bars = (11, 23, 35, 47, 59, 71)
    plan = Plan(72, base_costs(72, 72 if look else 72 - LA, bars), 24)
    dma_period(plan, 'w2', (6, 7, 8), it, 0)
    if it + 2 <= 8:
        for gk, js in ((1, (0, 1, 2)), (2, (3, 4, 5)), (3, (6, 7, 8))):
            dma_period(plan, 'w1', js, it + 2, 12 * gk)
    for gk, js in ((4, (0, 1, 2)), (5, (3, 4, 5))):
        dma_period(plan, 'w2', js, it + 1, 12 * gk)
    plan.put(27, ('lds', f'ds_write_b128 v{vXW}, {vr(FO[p2],4)}', ('xw', it)))
    plan.put(28, ('lds', f'ds_write_b128 v{vXW}, {vr(FO[p2]+4,4)} offset:1024', ('xw', it)))
    plan.put(36, ('lds', f'ds_read_b128 {ar(FP,4)}, v{vXR}', ('fp', it)))
    plan.put(36, ('lds', f'ds_read_b128 {ar(FP+4,4)}, v{vXR} offset:1024', ('fp', it)))
    plan.spread(advance('w2'), 14, 22)
    plan.spread(advance('w1'), 50, 58)
    if it <= 6:
        plan.put(JT, ('vm', f'buffer_load_dword v249, v{vP1}, {sr(sW1,4)}, 0 offen', 'touch'))
        plan.put(JT + 1, ('vm', f'buffer_load_dword v249, v{vP2}, {sr(sW2,4)}, 0 offen', 'touch'))
        plan.put(JT + 4, f'v_add_u32 v{vP1}, 128, v{vP1}')
        plan.put(JT + 5, f'v_add_u32 v{vP2}, 73728, v{vP2}')
    if 1 <= it <= 6 and 'noHt' not in EXP:
        plan.put(JT + 2, ('vm', f'buffer_load_dword v249, v{vPH}, {sr(sH,4)}, 0 offen', 'touch'))
        plan.put(JT + 6, f'v_add_u32 v{vPH}, 768, v{vPH}')
    if tail: tail(plan)
    if not first: plan.spread(silu_ops(p2)[SILU_K:], 0, 25)
    plan.spread(silu_ops(p1)[:SILU_K], 40, 71)
    bar = {11: tg('w1', (6, 7, 8), it + 1), 23: tg('w2', (0, 1, 2), it), 35: tg('w2', (3, 4, 5), it),
           47: tg('w2', (6, 7, 8), it),
           59: tg('w1', (0, 1, 2), it + 2) if it + 2 <= 8 else None,
           71: tg('w1', (3, 4, 5), it + 2) if it + 2 <= 8 else None}
    extra = {32: [('xw', it)], 40: [('fp', it)]}
    post = getattr(tail, 'post', None) if tail else None
    after = getattr(tail, 'after', None) if tail else None
    for k, v in (getattr(tail, 'need', None) or {}).items(): bar[k] = list(bar[k]) + list(v)
    return run_segment(sch, mf, plan, bar, 'B', base_idx, look, waits, extra, first, post, after)


vP1, vP2, vPH = 238, 239, 240
KD, VD, WD = 80, 102, 32
KX, WX, UX = 128, 172, 188
NSX = int(os.environ.get('NSX', '2'))
sJ = 97
sKVB, sKVM = 94, 95
sTS = 16
def kv_ops():
    M = f's{sMASK}'
    o = []
    for ch in range(4):
        o += [f'v_lshlrev_b32 v{WX+0+ch}, 16, v{WD+2*ch}', f'v_and_b32 v{WX+4+ch}, {M}, v{WD+2*ch}',
              f'v_lshlrev_b32 v{WX+8+ch}, 16, v{WD+2*ch+1}', f'v_and_b32 v{WX+12+ch}, {M}, v{WD+2*ch+1}']
    for i in range(11):
        o += [f'v_lshlrev_b32 v{KX+4*i}, 16, v{KD+2*i}', f'v_and_b32 v{KX+4*i+1}, {M}, v{KD+2*i}',
              f'v_lshlrev_b32 v{KX+4*i+2}, 16, v{KD+2*i+1}', f'v_and_b32 v{KX+4*i+3}, {M}, v{KD+2*i+1}']
    T = 80
    for r in range(8):
        for hp in range(2):
            o.append(f'v_pk_mul_f32 {vr(UX+4*r+2*hp,2)}, {vr(KX+4*(r+3)+2*hp,2)}, {vr(WX+2*hp,2)}')
        for j in range(1, 4):
            for hp in range(2):
                u = UX + 4 * r + 2 * hp
                o.append(f'v_pk_fma_f32 {vr(u,2)}, {vr(KX+4*(r+3-j)+2*hp,2)}, {vr(WX+4*j+2*hp,2)}, {vr(u,2)}')
        o += [f'v_lshlrev_b32 v{T}, 16, v{VD+2*r}', f'v_and_b32 v{T+1}, {M}, v{VD+2*r}',
              f'v_lshlrev_b32 v{T+2}, 16, v{VD+2*r+1}', f'v_and_b32 v{T+3}, {M}, v{VD+2*r+1}',
              f'v_pk_mul_f32 {vr(UX+4*r,2)}, {vr(UX+4*r,2)}, {vr(T,2)}',
              f'v_pk_mul_f32 {vr(UX+4*r+2,2)}, {vr(UX+4*r+2,2)}, {vr(T+2,2)}']
    P = 128
    for ch in range(4):
        for d in range(4):
            o.append(f'v_cvt_pk_bf16_f32 v{P+4*ch+d}, v{UX+4*(7-2*d)+ch}, v{UX+4*(6-2*d)+ch}')
    for k in range(4): o.append(f'v_mov_b32 v{T+k}, 0')
    for ch in range(4):
        o.append(('vmg', [f's_movk_i32 s82, {ch*UR_PITCH}', f'buffer_store_dwordx4 {vr(P+4*ch,4)}, v236, {sr(sWS,4)}, s82 offen sc1'], 'ust'))
    o.append(('grp', PADSTORE(T)))
    return o
def PADSTORE(T):
    r = [f's_cmp_lg_u32 s{sMT}, 0', 's_cbranch_scc1 K1_NOPAD']
    for ch in range(4):
        r += [f's_movk_i32 s82, {ch*UR_PITCH}', f'buffer_store_dwordx4 {vr(T,4)}, v237, {sr(sWS,4)}, s82 offen sc1']
    r.append('LABEL K1_NOPAD')
    return r

_stag = [0]
def stagger(g, unit):
    n = _stag[0]; _stag[0] += 1
    e = g.e
    e(f's_mov_b32 s82, s{sW}')
    g.lab(f'K1_STG{n}')
    e('s_cmp_eq_u32 s82, 0')
    e(f's_cbranch_scc1 K1_STGE{n}')
    for k in range(max(1, (unit - 16) // 4)): e('s_nop 0')
    e('s_sub_u32 s82, s82, 1')
    e(f's_branch K1_STG{n}')
    g.lab(f'K1_STGE{n}')

def prologue(g):
    e = g.e
    sch = Sched(g)
    e('s_cmp_ge_u32 s2, 256')
    e('s_cbranch_scc1 K1_END')
    e('s_load_dwordx8 s[4:11], s[0:1], 0')
    e('s_load_dwordx4 s[12:15], s[0:1], 32')
    e('s_load_dwordx4 s[16:19], s[0:1], 56')
    e('s_load_dwordx4 s[20:23], s[0:1], 80')
    if STAMPS: e('v_mov_b32 v251, 0')
    stamp(g, 0)
    e('s_getpc_b64 s[84:85]')
    g.lab('K1_PC')
    e('s_and_b32 s82, s2, 7')
    e('s_lshr_b32 s83, s2, 3')
    if NSX == 1:
        e(f's_mov_b32 s{sSP}, s82'); e(f's_mov_b32 s{sMT}, s83'); e(f's_mov_b32 s{sJ}, s83')
    else:
        lb = NSX.bit_length() - 1
        e(f's_and_b32 s{sSP}, s82, {8//NSX - 1}')
        e(f's_lshl_b32 s{sSP}, s{sSP}, {lb}')
        e(f's_and_b32 s86, s83, {NSX - 1}')
        e(f's_add_u32 s{sSP}, s{sSP}, s86')
        e(f's_lshr_b32 s{sJ}, s83, {lb}')
        e(f's_lshr_b32 s{sMT}, s82, {3 - lb}')
        e(f's_lshl_b32 s{sMT}, s{sMT}, {5 - lb}')
        e(f's_add_u32 s{sMT}, s{sMT}, s{sJ}')
    e(f'v_and_b32 v{vLANE}, 63, v0')
    e(f'v_lshrrev_b32 v{vT0}, 6, v0')
    e(f'v_lshrrev_b32 v2, 3, v{vLANE}')
    e(f'v_readfirstlane_b32 s{sW}, v{vT0}')
    e(f'v_and_b32 v3, 7, v{vLANE}')
    e(f'v_lshrrev_b32 v4, 4, v{vLANE}')
    e(f's_lshl_b32 s{sM1}, s{sW}, 11')
    e(f's_add_u32 s{sM2}, s{sM1}, {W2BASE}')
    e(f's_lshl_b32 s82, s{sW}, 4')
    e(f'v_add_u32 v5, s82, v2')
    e(f'v_xor_b32 v6, v3, v4')
    e(f'v_mul_u32_u24 v7, 1152, v5')
    e(f'v_lshl_add_u32 v{SP0}, v6, 4, v7')
    e(f'v_xor_b32 v6, 4, v6')
    e(f'v_lshl_add_u32 v{SP0+1}, v6, 4, v7')
    e(f'v_add_u32 v{SP0+1}, {8*1152-1024}, v{SP0+1}')
    e(f's_mul_i32 s86, s{sMT}, {64*1152}')
    NSH = 32 // NSX; LPW = 576 // NSH // 4; NCH = 64 // LPW
    e(f'v_mov_b32 v9, 0x80000000')
    e(f's_lshl_b32 s87, s{sJ}, 2')
    e(f's_add_u32 s87, s87, s{sW}')
    e(f's_mul_i32 s87, s87, {LPW}')
    e(f'v_mul_u32_u24 v243, {(65536 + LPW - 1)//LPW}, v{vLANE}')
    e(f'v_lshrrev_b32 v243, 16, v243')
    e(f'v_mul_u32_u24 v6, {LPW}, v243')
    e(f'v_sub_u32 v6, v{vLANE}, v6')
    e(f'v_add_u32 v6, s87, v6')
    e(f's_movk_i32 s87, 9216')
    e(f'v_mul_lo_u32 v{vP1}, v6, s87')
    e(f'v_lshl_add_u32 v{vP1}, v243, 7, v{vP1}')
    e(f's_mul_i32 s83, s{sSP}, 1152')
    e(f'v_add_u32 v{vP1}, s83, v{vP1}')
    e(f'v_mul_u32_u24 v8, 7282, v6')
    e(f'v_lshrrev_b32 v8, 16, v8')
    e(f'v_mul_u32_u24 v14, 9, v8')
    e(f'v_sub_u32 v6, v6, v14')
    e(f'v_lshl_add_u32 v8, v243, 6, v8')
    e(f'v_mul_u32_u24 v8, 1152, v8')
    e(f'v_lshl_add_u32 v8, v6, 7, v8')
    e(f's_mul_i32 s82, s{sSP}, {576*1152}')
    e(f'v_add_u32 v{vP2}, s82, v8')
    e(f'v_cmp_gt_u32 vcc, 1, v243')
    e(f's_lshr_b32 s83, s2, 3')
    e(f's_min_u32 s82, s83, (K1_END-K1_PC)/1024')
    e(f'v_cndmask_b32 v5, v9, v{vP1}, vcc')
    e(f's_lshl_b32 s82, s82, 10')
    e('s_add_u32 s84, s84, s82')
    e('s_addc_u32 s85, s85, 0')
    e(f'v_lshlrev_b32 v{vT0}, 2, v0')
    e('s_waitcnt lgkmcnt(0)')
    srd(g, sW1, 16, W1BYTES)
    srd(g, sW2, 18, W2BYTES)
    srd(g, sQ, 4, QBYTES)
    e(f's_or_b32 s82, s2, s{sW}')
    e('s_cmp_lg_u32 s82, 0')
    e('s_cbranch_scc1 K1_NONONCE')
    e('s_memrealtime s[90:91]')
    e('s_waitcnt lgkmcnt(0)')
    e('s_or_b32 s90, s90, 1')
    e('v_mov_b32 v248, 0')
    e('v_mov_b32 v249, s90')
    e('s_mov_b64 exec, 1')
    e('global_store_dword v248, v249, s[20:21] sc1')
    e('s_mov_b64 exec, -1')
    g.lab('K1_NONONCE')
    if 'tlb' in EXP:
        srd(g, sWS, 22, 0x2000000)
        srd(g, sH, 12, HBYTES)
        srd(g, sK, 6, QBYTES)
        srd(g, sV, 8, QBYTES)
        e(f'v_lshlrev_b32 v248, 21, v{vLANE}')
        for r in (sW1, sW2, sK, sV, sH, sWS):
            sch.vm_op(f'buffer_load_dword v249, v248, {sr(r,4)}, 0 offen', 'touch')
        e(f's_mov_b32 s{sWS+2}, {WS_BYTES}')
    if 't1early' in EXP: sch.vm_op(f'buffer_load_dword v249, v5, {sr(sW1,4)}, 0 offen', 'touch')
    for lam in range(9):
        e(f's_add_u32 m0, s{sM2}, {lam*8192}')
        if lam: e(f's_add_u32 s86, s86, 128')
        else: e('s_nop 0')
        sch.vm_op(f'buffer_load_dwordx4 v{SP0}, {sr(sQ,4)}, s86 offen lds', ('q', lam))
        sch.vm_op(f'buffer_load_dwordx4 v{SP0+1}, {sr(sQ,4)}, s86 offen offset:1024 lds', ('q', lam))
        if lam == 0: sch.vm_op(f'global_load_dword v250, v{vT0}, s[84:85]', 'pf')
    if 't1early' not in EXP: sch.vm_op(f'buffer_load_dword v249, v5, {sr(sW1,4)}, 0 offen', 'touch')
    e(f'v_subrev_u32 v246, 1, v243')
    e(f'v_cmp_gt_u32 vcc, 2, v246')
    e('s_nop 1')
    e(f'v_cndmask_b32 v246, v9, v{vP1}, vcc')
    e(f'v_cmp_gt_u32 vcc, 2, v243')
    e('s_nop 1')
    e(f'v_cndmask_b32 v247, v9, v{vP2}, vcc')
    e(f's_mov_b32 s{sMASK}, 0xffff0000')
    e(f's_lshr_b32 s{sMI}, s{sW}, 1')
    e(f's_and_b32 s{sX}, s{sW}, 1')
    e(f'v_and_b32 v6, 1, v4')
    e(f'v_lshlrev_b32 v6, 2, v6')
    e(f'v_xor_b32 v6, v3, v6')
    e(f'v_lshlrev_b32 v6, 4, v6')
    e(f's_mul_i32 s82, s{sSP}, {576*1152}')
    e(f'v_add3_u32 v{vW2[0]}, v7, v6, s82')
    e(f'v_add_u32 v{vW2[1]}, {8*1152-1024}, v{vW2[0]}')
    e(f's_mul_i32 s83, s{sSP}, 1152')
    e(f'v_lshlrev_b32 v7, 3, v7')
    e(f'v_add3_u32 v{vW1[0]}, v7, v6, s83')
    e(f'v_add_u32 v{vW1[1]}, {8*9216-1024}, v{vW1[0]}')
    for j in range(9):
        e(f's_mov_b32 s{sOFF1+j}, {j*589824}')
        e(f's_mov_b32 s{sOFF2+j}, {j*128}')
    e(f'v_add_u32 v{vP1}, {3*128}, v{vP1}')
    e(f'v_add_u32 v{vP2}, {2*73728}, v{vP2}')
    e(f'v_cmp_gt_u32 vcc, 1, v243')
    e('s_nop 1')
    e(f'v_cndmask_b32 v{vP1}, v9, v{vP1}, vcc')
    e(f'v_cndmask_b32 v{vP2}, v9, v{vP2}, vcc')
    touches = []
    KO, VO = 228, 231
    srd(g, sK, 6, QBYTES)
    srd(g, sV, 8, QBYTES)
    srd(g, sSK, 10, 576 * 8)
    e(f's_lshl_b32 s82, s{sW}, 6')
    e(f'v_add_u32 v5, s82, v{vLANE}')
    e(f's_mul_i32 s83, s{sMT}, {64*1152}')
    e(f's_mul_i32 s82, s{sSP}, 144')
    e(f's_add_u32 s{sKVB}, s83, s82')
    e(f's_sub_u32 s87, s{sKVB}, {3*1152}')
    e(f's_movk_i32 s82, 7282')
    for n in range(3):
        if n: e(f'v_add_u32 v5, 256, v5')
        e(f'v_mul_lo_u32 v6, v5, s82')
        e(f'v_lshrrev_b32 v6, 16, v6')
        e(f'v_mul_u32_u24 v7, 9, v6')
        e(f'v_sub_u32 v7, v5, v7')
        e(f'v_mul_u32_u24 v8, 1152, v6')
        e(f'v_lshl_add_u32 v8, v7, 4, v8')
        e(f'v_cmp_gt_u32 vcc, 64, v6')
        e(f'v_add_u32 v7, s87, v8')
        e('s_nop 0')
        e(f'v_cndmask_b32 v{VO+n}, v9, v8, vcc')
        e(f'v_cmp_gt_u32 vcc, 67, v6')
        e(f'v_cmp_le_i32 s[90:91], 0, v7')
        e(f's_and_b64 vcc, vcc, s[90:91]')
        e(f'v_cndmask_b32 v{KO+n}, v9, v7, vcc')
    e(f's_lshl_b32 s82, s{sW}, 10')
    e(f's_add_u32 s{sKVM}, s82, {KVB}')
    kvl = []
    for n in range(3):
        kvl.append(('vmg', [f's_add_u32 m0, s{sKVM}, {4096*n}', 's_nop 0', f'buffer_load_dwordx4 v{KO+n}, {sr(sK,4)}, 0 offen lds'], 'kv'))
        kvl.append(('vmg', [f's_add_u32 m0, s{sKVM}, {12288 + 4096*n}', 's_nop 0', f'buffer_load_dwordx4 v{VO+n}, {sr(sV,4)}, s{sKVB} offen lds'], 'kv'))
    e(f'v_lshrrev_b32 v5, 1, v0')
    e(f'v_and_b32 v6, 1, v0')
    e(f'v_mul_u32_u24 v6, 140, v6')
    e(f'v_mul_u32_u24 v7, 1152, v5')
    e(f'v_add_u32 v6, v6, v7')
    e(f'v_cmp_gt_u32 vcc, 64, v5')
    e(f'v_add_u32 v7, s87, v6')
    e('s_nop 0')
    e(f'v_cndmask_b32 v245, v9, v6, vcc')
    e(f'v_cmp_gt_u32 vcc, 67, v5')
    e(f'v_cmp_le_i32 s[90:91], 0, v7')
    e(f's_and_b64 vcc, vcc, s[90:91]')
    e(f'v_cndmask_b32 v244, v9, v7, vcc')
    tk = ('vm', f'buffer_load_dword v249, v244, {sr(sK,4)}, 0 offen', 'touch')
    tv = ('vm', f'buffer_load_dword v249, v245, {sr(sV,4)}, s{sKVB} offen', 'touch')
    t2a = ('vm', f'buffer_load_dword v249, v246, {sr(sW1,4)}, 0 offen', 'touch')
    t2b = ('vm', f'buffer_load_dword v249, v247, {sr(sW2,4)}, 0 offen', 'touch')
    ORD = os.environ.get('ORD', 'E')
    if ORD == 'A':
        for x in (tk, tv, t2a, t2b): sch.item(x)
        mid = []; post = []
    elif ORD == 'B':
        sch.item(tk); mid = [tv]; post = [t2a, t2b]
    elif ORD == 'C':
        mid = [tk, tv]; post = [t2a, t2b]
    elif ORD == 'D':
        for x in (t2a, t2b): sch.item(x)
        mid = [tk, tv]; post = []
    elif ORD == 'E':
        mid = []; post = [tk, tv, t2a, t2b]
    e(f's_mul_i32 s82, s{sW}, 36')
    e(f'v_add_u32 v5, s82, v{vLANE}')
    e(f'v_lshrrev_b32 v6, 3, v5')
    e(f's_mul_i32 s83, s{sSP}, 72')
    e(f'v_lshl_add_u32 v234, v6, 2, s83')
    e(f'v_and_b32 v235, 7, v5')
    e(f'v_lshlrev_b32 v7, 3, v234')
    e(f'v_cmp_gt_u32 vcc, 36, v{vLANE}')
    e(f'v_mul_u32_u24 v8, {8*144}, v235')
    e(f'v_lshl_add_u32 v8, v6, 3, v8')
    e(f'v_cndmask_b32 v242, v9, v7, vcc')
    e(f'v_add_u32 v241, {KVB}, v8')
    kvl.append(('vm', f'buffer_load_dwordx4 {vr(WD,4)}, v242, {sr(sSK,4)}, 0 offen', 'sk'))
    kvl.append(('vm', f'buffer_load_dwordx4 {vr(WD+4,4)}, v242, {sr(sSK,4)}, 0 offen offset:16', 'sk'))
    srd(g, sWS, 22, WS_BYTES)
    srd(g, sH, 12, HBYTES)
    e(f's_movk_i32 s82, {UR_PITCH}')
    e(f'v_mul_lo_u32 v7, v234, s82')
    e(f's_lshl_b32 s82, s{sMT}, 7')
    e(f'v_lshlrev_b32 v8, 4, v235')
    e(f'v_add_u32 v8, s82, v8')
    e(f'v_sub_u32 v7, v7, v8')
    e(f'v_add_u32 v7, {WS_UR + 4080}, v7')
    e(f'v_cmp_gt_u32 vcc, 36, v{vLANE}')
    e('s_nop 1')
    e(f'v_cndmask_b32 v236, v9, v7, vcc')
    e(f'v_cmp_eq_u32 s[90:91], 0, v8')
    e(f's_and_b64 vcc, vcc, s[90:91]')
    e(f'v_add_u32 v7, 16, v7')
    e(f'v_cndmask_b32 v237, v9, v7, vcc')
    e(f'v_lshrrev_b32 v2, 2, v{vLANE}')
    e(f's_lshl_b32 s82, s{sW}, 4')
    e(f'v_add_u32 v2, s82, v2')
    e(f'v_bfe_u32 v3, v2, 1, 3')
    e(f'v_and_b32 v4, 3, v{vLANE}')
    e(f'v_xor_b32 v3, v3, v4')
    e(f'v_lshlrev_b32 v3, 4, v3')
    e(f'v_lshl_add_u32 v3, v2, 7, v3')
    e(f'v_add_u32 v{SP0+4}, {W2BASE}, v3')
    e(f'v_xor_b32 v{SP0+5}, 64, v{SP0+4}')
    e(f'v_add_u32 v{SP0+6}, 32768, v{SP0+4}')
    e(f'v_add_u32 v{SP0+7}, 32768, v{SP0+5}')
    X = OACC
    M = f's{sMASK}'
    stamp(g, 1)
    def lnaddr(i):
        lam = i >> 1
        base = (SP0 + 4 + (i & 1)) if lam < 4 else (SP0 + 6 + (i & 1))
        return base, (lam if lam < 4 else lam - 4) * 8192
    e(f'v_mov_b32 v{TMP}, 0x3f803f80')
    for k in range(4): e(f'v_mov_b32 v{TMP+2+k}, 0')
    def dots(lam):
        for i in (2 * lam, 2 * lam + 1):
            for k in range(4):
                e(f'v_dot2c_f32_bf16 v{TMP+2+k}, v{X+72+4*i+k}, v{TMP}')
    for lam in range(9):
        e(f's_waitcnt vmcnt({sch.need_vm({("q", lam)})})')
        for i in (2 * lam, 2 * lam + 1):
            b, off = lnaddr(i)
            e(f'ds_read_b128 {vr(X+72+4*i,4)}, v{b} offset:{off}')
        if lam:
            e('s_waitcnt lgkmcnt(2)')
            dots(lam - 1)
    bg = []
    for j in range(9):
        m0, a, b = dma_pair('w1', j)
        bg.append(('vmg', [m0, 's_nop 0', a], ('w1', j, 0))); bg.append(('vm', b, ('w1', j, 0)))
    skl = [x for x in kvl if x[-1] == 'sk']
    sch.kv_dma = [x for x in kvl if x[-1] == 'kv']
    bg = bg[:8] + mid + bg[8:] + post + skl
    sch.late_touch = touches
    nbg = len(bg)
    state = {'k': 0, 'n': 0}
    TOT = 72 * 6
    def tick(n=1):
        state['n'] += n
        while state['k'] < nbg and state['k'] * TOT <= state['n'] * nbg:
            if bg[state['k']] is not None: sch.item(bg[state['k']])
            state['k'] += 1
    e('s_waitcnt lgkmcnt(0)')
    dots(8)
    stamp(g, 3)
    e('s_nop 3')
    def quad_sum():
        e(f'v_add_f32 v{TMP+2}, v{TMP+2}, v{TMP+3}')
        e(f'v_add_f32 v{TMP+4}, v{TMP+4}, v{TMP+5}')
        e(f'v_add_f32 v{TMP+2}, v{TMP+2}, v{TMP+4}')
        e('s_nop 1')
        e(f'v_add_f32_dpp v{TMP+2}, v{TMP+2}, v{TMP+2} quad_perm:[1,0,3,2] row_mask:0xf bank_mask:0xf')
        e('s_nop 1')
        e(f'v_add_f32_dpp v{TMP+2}, v{TMP+2}, v{TMP+2} quad_perm:[2,3,0,1] row_mask:0xf bank_mask:0xf')
    if 'stagL' in EXP: stagger(g, int(os.environ.get('STG', '24')))
    quad_sum()
    e(f'v_mul_f32 v{TMP}, {f32(-1.0/576)}, v{TMP+2}')
    e(f'v_mov_b32 v{TMP+1}, v{TMP}')
    for k in range(4): e(f'v_mov_b32 v{TMP+2+k}, 0')
    for i in range(72):
        d = X + 72 + i
        e(f'v_lshlrev_b32 v{X+2*i}, 16, v{d}')
        e(f'v_and_b32 v{X+2*i+1}, {M}, v{d}')
        e(f'v_pk_add_f32 {vr(X+2*i,2)}, {vr(X+2*i,2)}, {vr(TMP,2)}')
        acc = TMP + 2 + 2 * (i & 1)
        e(f'v_pk_fma_f32 {vr(acc,2)}, {vr(X+2*i,2)}, {vr(X+2*i,2)}, {vr(acc,2)}')
        tick(4)
    quad_sum()
    e(f'v_mov_b32 v{TMP+3}, {f32(1e-5)}')
    e(f'v_fmac_f32 v{TMP+3}, {f32(1.0/576)}, v{TMP+2}')
    e(f'v_rsq_f32 v{TMP+3}, v{TMP+3}')
    e(f'v_sub_f32 v{TMP+2}, 0, v{TMP}')
    e(f'v_mul_f32 v{TMP+4}, {f32(-LOG2E)}, v{TMP+3}')
    e(f'v_mov_b32 v{TMP+5}, v{TMP+4}')
    for i in range(72):
        e(f'v_pk_mul_f32 {vr(X+2*i,2)}, {vr(X+2*i,2)}, {vr(TMP+4,2)}')
        e(f'v_cvt_pk_bf16_f32 v{X+i}, v{X+2*i}, v{X+2*i+1}')
        if i % 4 == 3:
            b, off = lnaddr(i // 4)
            e(f'ds_write_b128 v{b}, {vr(X+i-3,4)} offset:{off}')
        tick(2)
    assert state['k'] == nbg
    e(f's_cmp_lg_u32 s{sSP}, 0')
    e('s_cbranch_scc1 K1_NOSTAT')
    e(f'v_and_b32 v2, 3, v{vLANE}')
    e(f'v_cmp_eq_u32 vcc, 0, v2')
    e(f'v_lshrrev_b32 v2, 2, v{vLANE}')
    e(f's_lshl_b32 s82, s{sMT}, 6')
    e(f's_lshl_b32 s83, s{sW}, 4')
    e('s_add_u32 s82, s82, s83')
    e(f'v_add_u32 v2, s82, v2')
    e(f'v_lshlrev_b32 v2, 3, v2')
    e(f'v_add_u32 v2, {WS_STATS}, v2')
    e('s_and_saveexec_b64 s[86:87], vcc')
    e(f'buffer_store_dwordx2 {vr(TMP+2,2)}, v2, {sr(sWS,4)}, 0 offen')
    e('s_mov_b64 exec, s[86:87]')
    g.lab('K1_NOSTAT')
    e(f'v_and_b32 v2, 31, v{vLANE}')
    e(f's_lshl_b32 s82, s{sMI}, 5')
    e(f'v_add_u32 v2, s82, v2')
    e(f'v_bfe_u32 v3, v2, 1, 3')
    e(f'v_lshrrev_b32 v4, 5, v{vLANE}')
    e(f'v_xor_b32 v3, v3, v4')
    e(f'v_lshlrev_b32 v3, 4, v3')
    e(f'v_lshl_add_u32 v3, v2, 7, v3')
    e(f'v_add_u32 v2, {W2BASE}, v3')
    e(f'v_xor_b32 v3, 32, v2')
    e(f'v_xor_b32 v4, 64, v2')
    e(f'v_xor_b32 v5, 96, v2')
    for t in range(4): e(f'v_add_u32 v{6+t}, 32768, v{2+t}')
    stamp(g, 4)
    e(f's_waitcnt lgkmcnt(0)')
    e('s_barrier')
    for k in range(36):
        lam, t = k >> 2, k & 3
        base = (2 + t) if lam < 4 else (6 + t)
        off = (lam if lam < 4 else lam - 4) * 8192
        e(f'ds_read_b128 {ar(XN+4*k,4)}, v{base} offset:{off}')
    e(f'v_and_b32 v14, 15, v{vLANE}')
    e(f'v_lshrrev_b32 v15, 5, v{vLANE}')
    e(f'v_bfe_u32 v{TMP}, v{vLANE}, 4, 1')
    e(f'v_lshlrev_b32 v{TMP}, 5, v{TMP}')
    e(f'v_and_b32 v{TMP+1}, 3, v14')
    e(f'v_lshl_add_u32 v{TMP}, v{TMP+1}, 3, v{TMP}')
    e(f's_lshl_b32 s82, s{sX}, 6')
    e(f'v_add_u32 v{TMP}, s82, v{TMP}')
    e(f'v_bfe_u32 v{TMP+1}, v14, 3, 1')
    e(f'v_lshlrev_b32 v{TMP+1}, 6, v{TMP+1}')
    e(f'v_xor_b32 v{TMP}, v{TMP}, v{TMP+1}')
    e(f'v_lshrrev_b32 v{TMP+1}, 2, v14')
    e(f'v_lshl_add_u32 v{TMP+2}, v15, 3, v{TMP+1}')
    e(f'v_lshl_add_u32 v{vA1[0]}, v{TMP+2}, 7, v{TMP}')
    e(f'v_add_u32 v{vA1[1]}, 65536, v{vA1[0]}')
    e(f'v_lshl_add_u32 v{TMP+2}, v15, 2, v{TMP+1}')
    e(f'v_lshl_add_u32 v{TMP+2}, v{TMP+2}, 7, v{TMP}')
    e(f's_lshl_b32 s82, s{sX}, 12')
    e(f's_add_u32 s83, s82, {W2BASE}')
    e(f'v_add_u32 v{vA2O[0]}, s83, v{TMP+2}')
    e(f'v_add_u32 v{vA2O[1]}, 65536, v{vA2O[0]}')
    e(f's_xor_b32 s82, s82, 4096')
    e(f's_add_u32 s83, s82, {W2BASE}')
    e(f'v_add_u32 v{vA2P[0]}, s83, v{TMP+2}')
    e(f'v_add_u32 v{vA2P[1]}, 65536, v{vA2P[0]}')
    e(f'v_lshlrev_b32 v{TMP}, 4, v{vLANE}')
    e(f's_add_u32 s82, s{sM1}, {XCH}')
    e(f'v_add_u32 v{vXW}, s82, v{TMP}')
    e(f'v_xor_b32 v{vXR}, 2048, v{vXW}')
    return sch

HW = 16640
UW = 15360
vPOLLA, vPOLL = 254, 255
vHD, vHX, vUL0, vUL1 = 228, 229, 230, 231
UL = 96

def conv_setup_ops():
    o = []
    o.append(('grp', ['s_lshl_b32 s88, s2, 2', f's_add_u32 s{sCH}, s88, s{sW}']))
    o.append(('grp', [f's_mul_i32 s{sCB}, s{sW}, {HW}', f's_lshl_b32 s83, s{sCH}, 12']))
    o.append(f'v_lshrrev_b32 v{vHD}, 2, v{vLANE}')
    o.append(f'v_and_b32 v{vHX}, 3, v{vLANE}')
    o.append(f'v_add_u32 v{vHD}, v{vHD}, v{vHX}')
    o.append(f'v_subrev_u32 v{vHD}, 16, v{vHD}')
    o.append(f'v_cmp_gt_i32 vcc, 0, v{vHD}')
    o.append(f'v_lshlrev_b32 v{vHD}, 2, v{vHD}')
    o.append(f'v_add_u32 v{vHD}, s83, v{vHD}')
    o.append(f'v_mov_b32 v{vHX}, 0x80000000')
    o.append(f'v_cndmask_b32 v{vHD}, v{vHD}, v{vHX}, vcc')
    o.append(f'v_lshlrev_b32 v{vHX}, 2, v{vLANE}')
    o.append(f'v_add_u32 v{vHX}, s83, v{vHX}')
    o.append(('grp', [f's_cmp_lt_u32 s2, 144', f's_cselect_b32 s83, 0, 0x80000000',
                      f's_mul_i32 s86, s{sCH}, {UR_PITCH}', f's_add_u32 s86, s86, {WS_UR}']))
    o.append(f'v_lshlrev_b32 v{vUL0}, 4, v{vLANE}')
    o.append(f'v_add_u32 v{vUL0}, s83, v{vUL0}')
    o.append(f'v_add_u32 v{vUL1}, 2, v{vUL0}')
    return o

def h_dma(b):
    if b < 0:
        return ('vmg', [f's_mov_b32 m0, s{sCB}', 's_mov_b32 s87, 0', f'buffer_load_dword v{vHD}, {sr(sH,4)}, 0 offen lds'], 'H')
    return ('vmg', [f's_add_u32 m0, s{sCB}, {256 + 1024*b}', f's_movk_i32 s87, {256*b}',
                    f'buffer_load_dwordx4 v{vHX}, {sr(sH,4)}, s87 offen lds'], 'H')
def u_load(b):
    reg = vUL0 if b < 4 else vUL1
    return ('vm', f'buffer_load_dwordx4 {ar(UL+4*b,4)}, v{reg}, {sr(sWS,4)}, s86 offen offset:{(b%4)*1024} sc1', 'U')

_old_item = Sched.item
def _item(s, f):
    if not isinstance(f, str) and f[0] == 'vmg':
        for t in f[1][:-1]: s.e(t)
        s.vm_op(f[1][-1], f[2])
    else: _old_item(s, f)
Sched.item = _item
_old_cost = cost
def cost(f):
    if not isinstance(f, str) and f[0] == 'vmg': return 14
    return _old_cost(f)

vNON, vNONA = 253, 252
def nonce_ready(g, tag):
    e = g.e
    e('s_mov_b32 s83, 0')
    g.lab(f'K1_NW{tag}')
    e(f'v_readfirstlane_b32 s82, v{vNON}')
    e('s_cmp_lg_u32 s82, 0')
    e(f's_cbranch_scc1 K1_NOK{tag}')
    e('s_add_u32 s83, s83, 1')
    e('s_cmp_ge_u32 s83, 0x40000')
    e(f's_cbranch_scc1 K1_NOK{tag}')
    e('s_sleep 8')
    e(f'global_load_dword v{vNON}, v{vNONA}, s[20:21] sc1')
    e('s_waitcnt vmcnt(0)')
    e(f's_branch K1_NW{tag}')
    g.lab(f'K1_NOK{tag}')

def main_ffn(g, sch):
    e = g.e
    sch.e(f's_waitcnt vmcnt({sch.need_vm(set(tg("w1", range(9), 0)))}) lgkmcnt(0)')
    stamp(g, 5)
    sch.e('s_barrier')
    stamp(g, 6)
    for f in advance('w1'): sch.item(f)
    mfA = [('G1', i, 0) for i in range(36)]
    prime(sch, mfA, 'A')
    plan = Plan(36, base_costs(36, 36 - LA, (11, 23, 35)), 24)
    if 'nokvd' not in EXP: plan.spread(sch.kv_dma, 0, 10)
    else: sch.vm.append('kv')
    dma_period(plan, 'w1', (0, 1, 2), 1, 12)
    dma_period(plan, 'w1', (3, 4, 5), 1, 24)
    setup = [('grp', ['s_mul_i32 s82, s2, 3641', 's_lshr_b32 s82, s82, 16', 's_min_u32 s82, s82, 7', 's_lshl_b32 s82, s82, 12', f's_add_u32 s82, s82, {WS_FLAG}']),
             f'v_and_b32 v{vPOLLA}, 31, v{vLANE}', f'v_lshlrev_b32 v{vPOLLA}, 7, v{vPOLLA}', f'v_add_u32 v{vPOLLA}, s82, v{vPOLLA}',
             ('grp', ['s_lshl_b32 s82, s2, 2', f's_add_u32 s82, s82, s{sW}', 's_lshl_b32 s82, s82, 12']),
             f'v_lshlrev_b32 v{vPH}, 7, v{vLANE}', f'v_add_u32 v{vPH}, s82, v{vPH}',
             f'v_cmp_gt_u32 vcc, 6, v{vLANE}', f'v_mov_b32 v{vT0}, 0x80000000', 's_nop 0', f'v_cndmask_b32 v{vPH}, v{vT0}, v{vPH}, vcc']
    plan.spread(setup, 12, 34)
    run_segment(sch, mfA, plan, {11: None, 23: None, 35: ['kv', 'sk']}, 'A')
    e(f'v_mov_b32 v{vNONA}, 0')
    sch.vm_op(f'global_load_dword v{vNON}, v{vNONA}, s[20:21] sc1', 'nonce')
    stamp(g, 2)
    for i in range(11): sch.lds_op(f'ds_read_b64 {vr(KD+2*i,2)}, v241 offset:{i*144}', 'kvr')
    for i in range(8): sch.lds_op(f'ds_read_b64 {vr(VD+2*i,2)}, v241 offset:{12288 + i*144}', 'kvr')
    bg = []
    for reg, js, ch in (('w1', (6, 7, 8), 1), ('w2', range(6), 0)):
        for j in js:
            m0, a, b = dma_pair(reg, j)
            bg.append(('vmg', [m0, 's_nop 0', a], (reg, j, ch))); bg.append(('vm', b, (reg, j, ch)))
    bg.insert(6, advance('w1')[0]); bg.insert(7, advance('w1')[1])
    if 'stagV' in EXP: stagger(g, int(os.environ.get('STG', '24')))
    work = silu_ops(0) + ['s_waitcnt lgkmcnt(0)'] + kv_ops()
    if 'noVdma' in EXP:
        for x in bg:
            if not isinstance(x, str): sch.vm.append(x[-1])
        bg = [x for x in bg if isinstance(x, str)]
    if 'noVkv' in EXP:
        work = silu_ops(0) + ['s_waitcnt lgkmcnt(0)'] + ['s_nop 0'] * 40; sch.vm.append('ust')
    if 'noVst' in EXP:
        work = [x for x in work if isinstance(x, str) or x[-1] != 'ust']; sch.vm.append('ust')
    nb = len(bg); k = 0
    for n, f in enumerate(work):
        sch.item(f)
        while k < nb and k * (len(work) - 30) <= n * nb:
            sch.item(bg[k]); k += 1
    assert k == nb
    stamp(g, 7)
    sch.e(f's_waitcnt vmcnt({sch.need_vm(set(tg("w1", range(6), 1)))})')
    sch.e('s_barrier')
    stamp(g, 8)
    mf0 = [('G1', i, 1) for i in range(36)]
    prime(sch, mf0, 'B')
    def tail0(plan):
        pass
    def signal():
        e(f's_cmp_lg_u32 s{sW}, 0')
        e('s_cbranch_scc1 K1_NOSIG')
        nonce_ready(g, 'S')
        e(f's_lshl_b32 s82, s{sSP}, 5')
        e(f's_add_u32 s82, s82, s{sMT}')
        e(f's_lshl_b32 s82, s82, 7')
        e(f's_add_u32 s82, s82, {WS_FLAG}')
        e(f'v_mov_b32 v{vT0}, 0')
        e('s_mov_b64 exec, 1')
        e(f'buffer_store_dword v{vNON}, v{vT0}, {sr(sWS,4)}, s82 offen sc1')
        e('s_mov_b64 exec, -1')
        e('s_nop 3')
        g.lab('K1_NOSIG')
    tail0.need = {59: ['ust', 'nonce']}
    tail0.after = {59: signal} if 'nosig' not in EXP else {}
    iteration(sch, 0, 0, False, first=True, tail=tail0)
    if STAMPS:
        e('s_memtime s[92:93]'); e('s_waitcnt lgkmcnt(0)'); e('v_writelane_b32 v251, s92, 51')
    sim = Sched(G()); sim.lds = list(sch.lds); sim.vm = list(sch.vm)
    got = {}
    for it in range(1, 7):
        sim.g = G(); got[it] = iteration(sim, it, 72 * it, False)
    waits = {}
    for par in (0, 1):
        w = {}
        for it in range(1, 7):
            if it % 2 == par:
                for k, v in got[it].items(): w[k] = min(w.get(k, 63), v)
        waits[par] = w
    print('vm waits', waits)
    e(f's_mov_b32 s{sCNT}, 0')
    g.raw('.p2align 3')
    g.lab('K1_LOOP')
    bodies = []
    sch.inloop = True
    for it in range(1, 7):
        if it <= 2:
            iteration(sch, it, 72 * it, False, waits[it % 2])
        else:
            gg = G(); old = sch.g; sch.g = gg
            iteration(sch, it, 72 * it, False, waits[it % 2])
            sch.g = old; bodies.append(gg.text())
        if STAMPS and it <= 2:
            e('s_memtime s[92:93]'); e('s_waitcnt lgkmcnt(0)')
            e(f's_lshl_b32 s93, s{sCNT}, 1'); e(f's_add_u32 s93, s93, {52 + (it - 1)}')
            e('v_mov_b32 v250, s92'); e('s_nop 1')
            e(f'v_cmp_eq_u32 vcc, s93, v{vLANE}'); e('s_nop 1')
            e('v_cndmask_b32 v251, v251, v250, vcc')
        if it == 2:
            e(f's_add_u32 s{sCNT}, s{sCNT}, 1')
            e(f's_cmp_lt_u32 s{sCNT}, 3')
            e('s_cbranch_scc1 K1_LOOP')
    assert bodies[0] == bodies[2] and bodies[1] == bodies[3]
    sch.inloop = False
    stamp(g, 9)
    def tail(plan):
        plan.put(0, ('vm', f'buffer_load_dword v{vPOLL}, v{vPOLLA}, {sr(sWS,4)}, 0 offen sc1', 'poll'))
        plan.spread(conv_setup_ops(), 2, 33)
        plan.spread([h_dma(b) for b in range(-1, 11)], 36, 47)
        plan.spread([u_load(b) for b in range(8)], 48, 70)
    def check():
        n = sch.need_vm({'poll'})
        e('s_cmp_ge_u32 s2, 144')
        e('s_cbranch_scc1 K1_POLLED')
        e(f's_cmp_lg_u32 s{sW}, 0')
        e('s_cbranch_scc1 K1_POLLED')
        e(f's_waitcnt vmcnt({n})')
        e('s_mov_b32 s83, 0')
        g.lab('K1_POLL')
        e(f'v_cmp_ne_u32 vcc, v{vNON}, v{vPOLL}')
        e('s_nop 4')
        e('s_cbranch_vccz K1_POLLED')
        e('s_add_u32 s83, s83, 1')
        e('s_cmp_ge_u32 s83, 0x40000')
        e('s_cbranch_scc1 K1_POLLED')
        e('s_sleep 8')
        e(f'buffer_load_dword v{vPOLL}, v{vPOLLA}, {sr(sWS,4)}, 0 offen sc1')
        e('s_waitcnt vmcnt(0)')
        e('s_branch K1_POLL')
        g.lab('K1_POLLED')
    tail.post = {35: check} if 'nosig' not in EXP else {}
    iteration(sch, 7, 72 * 7, True, tail=tail)
    stamp(g, 10)
    dma_now(sch, 'w2', (6, 7, 8), 8)
    for op in silu_ops(0)[SILU_K:]: sch.e(op)
    sch.lds_op(f'ds_write_b128 v{vXW}, {vr(FO[0],4)}', ('xw', 8))
    sch.lds_op(f'ds_write_b128 v{vXW}, {vr(FO[0]+4,4)} offset:1024', ('xw', 8))
    w = sch.need_vm(set(tg('w2', range(6), 8)))
    sch.e(f's_waitcnt vmcnt({w}) lgkmcnt(0)')
    sch.e('s_barrier')
    sch.lds_op(f'ds_read_b128 {ar(FP,4)}, v{vXR}', ('fp', 8))
    sch.lds_op(f'ds_read_b128 {ar(FP+4,4)}, v{vXR} offset:1024', ('fp', 8))
    mfC = [('G2', i, 0) for i in range(36)]
    prime(sch, mfC, 'C')
    plan = Plan(36, base_costs(36, 36 - LA, (11,)), 24)
    plan.spread([h_dma(b) for b in range(11, 16)], 0, 9)
    run_segment(sch, mfC, plan, {11: tg('w2', (6, 7, 8), 8)}, 'C', extra_need={4: [('fp', 8)]})
    stamp(g, 11)
    return sch

def part_addr(g):
    e = g.e
    e(f's_lshl_b32 s82, s{sMT}, 1')
    e(f's_add_u32 s82, s82, s{sMI}')
    e(f's_mul_i32 s82, s82, 18')
    e(f's_add_u32 s82, s82, s{sX}')
    e(f's_lshl_b32 s82, s82, 3')
    e(f's_add_u32 s82, s82, s{sSP}')
    e(f's_lshl_b32 s82, s82, 11')
    e(f'v_lshlrev_b32 v{vT0}, 4, v{vLANE}')

def part_items():
    it = []
    for j in range(9):
        t = TMP if j % 2 == 0 else SP0
        for k in range(8):
            it.append(f'v_cvt_pk_bf16_f32 v{t+k}, v{OACC+16*j+2*k}, v{OACC+16*j+2*k+1}')
        it.append(('vm', f'buffer_store_dwordx4 {vr(t,4)}, v{vT0}, {sr(sWS,4)}, s82 offen sc1', 'part'))
        it.append(('vm', f'buffer_store_dwordx4 {vr(t+4,4)}, v{vT0}, {sr(sWS,4)}, s82 offen offset:1024 sc1', 'part'))
        if j < 8: it.append(f's_add_u32 s82, s82, {2*8*2048}')
    return it

def conv(g, sch):
    e = g.e
    A0 = 0; B0 = 16; SET = 48
    CACC = 16
    e('s_cmp_ge_u32 s2, 144')
    e('s_cbranch_scc1 K1_PART_ONLY')
    e(f's_lshl_b32 s83, s{sCH}, 1')
    e('s_and_b32 s83, s83, 0xfffffffc')
    e(f's_load_dword s{sD}, s[14:15], s83')
    part_addr(g)
    e(f's_mul_i32 s86, s{sW}, {UW}')
    e(f's_add_u32 s86, s86, {W2BASE}')
    e(f'v_lshrrev_b32 v2, 2, v{vLANE}')
    e(f'v_mul_u32_u24 v2, 96, v2')
    e(f'v_and_b32 v3, 3, v{vLANE}')
    e(f'v_lshl_add_u32 v2, v3, 4, v2')
    e(f'v_add_u32 v2, s86, v2')
    for k in range(4): e(f'v_mov_b32 v{8+k}, 0')
    e(f'v_and_b32 v4, 15, v{vLANE}')
    e(f'v_lshrrev_b32 v5, 4, v{vLANE}')
    e(f'v_lshlrev_b32 v6, 4, v4')
    e(f'v_lshl_add_u32 v6, v5, 6, v6')
    e(f's_add_u32 s83, s{sCB}, 16')
    e(f'v_add_u32 v6, s83, v6')
    e(f'v_sub_u32 v7, 15, v4')
    e(f'v_mul_u32_u24 v7, 96, v7')
    e(f'v_lshl_add_u32 v7, v5, 4, v7')
    e(f'v_add_u32 v7, s86, v7')
    stamp(g, 12)
    if STAMPS:
        e(f's_waitcnt vmcnt({sch.need_vm({"U"})})'); stamp(g, 17)
    e(f's_waitcnt vmcnt({sch.need_vm({"U", "H"})}) lgkmcnt(0)')
    e('s_barrier')
    stamp(g, 13)
    for b in range(4):
        e(f'ds_write_b128 v2, {ar(UL+4*b,4)} offset:{7680 + b*1536}')
        e(f'ds_write_b128 v2, {ar(UL+16+4*b,4)} offset:{b*1536}')
    e(f'ds_write_b128 v2, {vr(8,4)} offset:{7680 + 4*1536}')
    e(f'ds_write_b128 v2, {vr(8,4)} offset:{4*1536}')
    e(f's_lshr_b32 s83, s{sD}, 16')
    e(f's_and_b32 s86, s{sD}, 0xffff')
    e(f's_bitcmp1_b32 s{sCH}, 0')
    e(f's_cselect_b32 s{sD}, s83, s86')
    e(f's_lshl_b32 s{sD}, s{sD}, 16')
    e('s_waitcnt lgkmcnt(0)')
    s2 = Sched(g)
    def reads(s0):
        st = s0 % 2
        r = []
        for t in range(4):
            r.append(('lds', f'ds_read_b128 {ar(st*SET + A0 + 4*t, 4)}, v6 offset:{256*s0 + 4096*t}', ('c', s0)))
        for dl in range(4):
            for rho in range(2):
                r.append(('lds', f'ds_read_b128 {ar(st*SET + B0 + 8*dl + 4*rho, 4)}, v7 offset:{96*s0 + (3-dl)*1536 + rho*7680}', ('c', s0)))
        return r
    for f in reads(0): s2.item(f)
    pit = part_items()
    per = (len(pit) + 14) // 15
    for s0 in range(16):
        st = s0 % 2
        mm = [(t, tau, rho) for t in range(4) for tau in range(t, 4) for rho in range(2)]
        plan = Plan(20, [0] * 20, 8)
        if s0 < 15: plan.spread(reads(s0 + 1), 0, 11)
        chunk = pit[s0 * per:(s0 + 1) * per]
        if chunk: plan.spread(chunk, 0, 19)
        s2.e(f's_waitcnt lgkmcnt({s2.need_lds({("c", s0)})})')
        for n, (t, tau, rho) in enumerate(mm):
            acc = vr(CACC + 8*tau + 4*rho, 4)
            c = '0' if (s0 == 0 and t == 0) else acc
            s2.e(f'v_mfma_f32_16x16x32_bf16 {acc}, {ar(st*SET + A0 + 4*t, 4)}, {ar(st*SET + B0 + 8*(tau-t) + 4*rho, 4)}, {c}')
            for f in plan.fill[n]: s2.item(f)
    stamp(g, 14)
    e(f'v_sub_u32 v2, 15, v4')
    e(f'v_mul_u32_u24 v2, 96, v2')
    e(f'v_lshlrev_b32 v3, 4, v5')
    e(f'v_sub_u32 v2, v2, v3')
    e(f's_mul_i32 s86, s{sW}, {UW}')
    e(f's_add_u32 s86, s86, {W2BASE + 7680 + 48}')
    e(f'v_add_u32 v2, s86, v2')
    for tau in range(4):
        e(f'ds_read_b128 {vr(48+4*tau,4)}, v2 offset:{(3-tau)*1536}')
    e(f'v_lshlrev_b32 v3, 6, v4')
    e(f'v_lshl_add_u32 v3, v5, 4, v3')
    e(f's_lshl_b32 s82, s{sCH}, 12')
    e(f's_add_u32 s82, s82, {WS_Y}')
    e('s_waitcnt lgkmcnt(0)')
    for tau in range(4):
        t = 224 + 4 * tau
        for r in range(4):
            dw = 48 + 4 * tau + (3 - r)
            e(f'v_and_b32 v8, s{sMASK}, v{dw}')
            e(f'v_lshlrev_b32 v9, 16, v{dw}')
            e(f'v_fma_f32 v8, v8, s{sD}, v{CACC + 8*tau + r}')
            e(f'v_fma_f32 v9, v9, s{sD}, v{CACC + 8*tau + 4 + r}')
            e(f'v_cvt_pk_bf16_f32 v{t+r}, v8, v9')
        e(f'buffer_store_dwordx4 {vr(t,4)}, v3, {sr(sWS,4)}, s82 offen offset:{1024*tau}')
    e('s_branch K1_FIN')
    g.lab('K1_PART_ONLY')
    part_addr(g)
    e('s_nop 7')
    s3 = Sched(g)
    for f in part_items(): s3.item(f)
    g.lab('K1_FIN')
    if STAMPS:
        stamp(g, 15)
        e('s_waitcnt vmcnt(0)')
        stamp(g, 16)
        e('s_memrealtime s[92:93]'); e('s_waitcnt lgkmcnt(0)'); e('v_writelane_b32 v251, s92, 21')
        stamp_out(g)

def build_k1():
    g = G()
    g.raw('.globl ffn_conv_kernel\n.p2align 8\n.type ffn_conv_kernel,@function\nffn_conv_kernel:')
    sch = prologue(g)
    main_ffn(g, sch)
    conv(g, sch)
    g.lab('K1_END')
    g.e('s_endpgm')
    return g
```
